```python
import torch

def _softmax(x, axis=-1):
    return torch.softmax(x, dim=axis)

def _gelu(x):
    return torch.nn.functional.gelu(x, approximate='tanh')

def _silu(x):
    return torch.nn.functional.silu(x)

def _sigmoid(x):
    return torch.sigmoid(x)

def _layernorm(x, axis=-1, eps=1e-05):
    m = x.mean(dim=axis, keepdim=True)
    v = x.var(dim=axis, keepdim=True, unbiased=False)
    return (x - m) / torch.sqrt(v + eps)

def _scatter_add(tgt, idx, src, axis=0):
    return tgt.clone().index_add_(axis, idx, src)

def _segment_sum(src, seg, n):
    out = torch.zeros((n,) + src.shape[1:], dtype=src.dtype)
    return out.index_add_(0, seg, src)

def _pad(x, pw):
    flat = tuple((v for pair in reversed(pw) for v in pair))
    return torch.nn.functional.pad(x, flat)
kernel_name = 'adaLN_cond__sliding_block_cached__geglu_ffn__prompt'

def setup_inputs():

    _w = lambda a: (lambda t: t.to(torch.bfloat16) if t.is_floating_point() else t)(torch.as_tensor(a))

    def _A_setup():
        B, Sq, D = (1, 2048, 640)
        Hq, Hkv, Sk, Dh = (32, 32, 2048, 192)
        assert Hq % Hkv == 0, (Hq, Hkv)
        return {'x': _w((lambda *s: torch.randn(*s, dtype=torch.bfloat16) * 0.05)(B, Sq, D)), 'k_cache': _w((lambda *s: torch.randn(*s, dtype=torch.bfloat16) * 3.2)(B, Hkv, Sk, Dh)), 'v_cache': _w((lambda *s: torch.randn(*s, dtype=torch.bfloat16) * 0.4)(B, Hkv, Sk, Dh)), 'wq': _w((lambda *s: torch.randn(*s, dtype=torch.bfloat16) * 3.2)(D, Hq * Dh) * D ** (-0.5)), 'wo': _w((lambda *s: torch.randn(*s, dtype=torch.bfloat16) * 0.4)(Hq * Dh, D) * (Hq * Dh) ** (-0.5))}
    _A_in = _A_setup()

    def _B_setup():
        B, S, D, F = (1, 2048, 640, 1536)
        return {'x': _w((lambda *s: torch.randn(*s, dtype=torch.bfloat16) * 0.05)(B, S, D)), 'w_gate': _w((lambda *s: torch.randn(*s, dtype=torch.bfloat16) * 0.05)(D, F)), 'w_up': _w((lambda *s: torch.randn(*s, dtype=torch.bfloat16) * 0.05)(D, F)), 'w_down': _w((lambda *s: torch.randn(*s, dtype=torch.bfloat16) * 0.05)(F, D))}
    _B_in = _B_setup()
    return {'A_x': _A_in['x'], 'A_k_cache': _A_in['k_cache'], 'A_v_cache': _A_in['v_cache'], 'A_wq': _A_in['wq'], 'A_wo': _A_in['wo'], 'B_x': _B_in['x'], 'B_w_gate': _B_in['w_gate'], 'B_w_up': _B_in['w_up'], 'B_w_down': _B_in['w_down'], 'c': _w((lambda *s: torch.randn(*s, dtype=torch.bfloat16) * 0.1)(1, 640) * 8.0), 'w_mod': _w((lambda *s: torch.randn(*s, dtype=torch.bfloat16) * 0.1)(640, 6 * 640) * 640 ** (-0.5) * 8.0)}

def reference(A_x, A_k_cache, A_v_cache, A_wq, A_wo, B_x, B_w_gate, B_w_up, B_w_down, c, w_mod):

    def _A_ref(x, k_cache, v_cache, wq, wo):
        B, Sq, D = x.shape
        Hq, Dh = (32, 192)
        Hkv, Sk = (k_cache.shape[1], k_cache.shape[2])
        W = min(4096, max(256, Sk // 4))
        rep = Hq // Hkv
        q = (lambda x, *d: x.permute(*d))((x @ wq).reshape(B, Sq, Hq, Dh), 0, 2, 1, 3)
        k = (lambda x, n, axis: torch.repeat_interleave(x, n, dim=axis))(k_cache[:, :, Sk - W:, :], rep, axis=1)
        v = (lambda x, n, axis: torch.repeat_interleave(x, n, dim=axis))(v_cache[:, :, Sk - W:, :], rep, axis=1)
        scores = torch.einsum('bhqd,bhkd->bhqk', q, k) * Dh ** (-0.5)
        p = _softmax(scores, axis=-1)
        o = torch.einsum('bhqk,bhkd->bhqd', p, v)
        return (lambda x, *d: x.permute(*d))(o, 0, 2, 1, 3).reshape(B, Sq, Hq * Dh) @ wo

    def _B_ref(x, w_gate, w_up, w_down):
        return _gelu(x @ w_gate) * (x @ w_up) @ w_down
    x = A_x
    mod = (_silu(c) @ w_mod).reshape(c.shape[0], 6, 1, -1)
    sa, ca, ga, sb, cb, gb = (mod[:, 0].clone(), mod[:, 1].clone(), mod[:, 2].clone(), mod[:, 3].clone(), mod[:, 4].clone(), mod[:, 5].clone())
    h = _layernorm(x, axis=-1) * (1 + ca) + sa
    x = x + ga * _A_ref(h, A_k_cache, A_v_cache, A_wq, A_wo)
    h = _layernorm(x, axis=-1) * (1 + cb) + sb
    x = x + gb * _B_ref(h, B_w_gate, B_w_up, B_w_down)
    return x
```

```python
import re

_REG = re.compile(r'\b([vas])\[(\d+):(\d+)\]|\b([vas])(\d+)\b|\b(vcc|m0|exec|scc)\b')

TRANS = ('v_exp_f32', 'v_log_f32', 'v_rcp_f32', 'v_rsq_f32', 'v_sqrt_f32', 'v_sin_f32', 'v_cos_f32')


def regs_of(s):
    out = []
    for m in _REG.finditer(s):
        if m.group(1):
            out += [(m.group(1), i) for i in range(int(m.group(2)), int(m.group(3)) + 1)]
        elif m.group(4):
            out.append((m.group(4), int(m.group(5))))
        else:
            out.append((m.group(6), 0))
    return out


def R(kind, lo, n=1):
    return f"{kind}{lo}" if n == 1 else f"{kind}[{lo}:{lo + n - 1}]"


class Ins:
    __slots__ = ('text', 'op', 'dst', 'src', 'kind', 'tag', 'srcC', 'srcAB', 'passes', 'note')

    def __init__(self, text, tag=None):
        self.text = text
        self.tag = tag
        self.note = None
        self.srcC = set()
        self.srcAB = set()
        self.passes = 0
        t = text.split(';')[0].strip()
        if t.endswith(':'):
            self.op, self.kind, self.dst, self.src = 'label', 'label', set(), set()
            return
        parts = t.split(None, 1)
        op = parts[0]
        self.op = op
        ops = [o.strip() for o in parts[1].split(',')] if len(parts) > 1 else []
        opr = [set(regs_of(o)) for o in ops]
        allr = set().union(*opr) if opr else set()
        dst, src = set(), set()
        base = op.replace('_e32', '').replace('_e64', '').replace('_dpp', '').replace('_sdwa', '')
        if op.startswith('v_mfma'):
            kind = 'mfma'
            dst = opr[0]
            src = opr[1] | opr[2] | opr[3]
            self.srcAB = opr[1] | opr[2]
            self.srcC = opr[3]
            self.passes = 8 if '32x32x16' in op else 4
        elif op.startswith('v_'):
            kind = 'trans' if base in TRANS else 'valu'
            dst = set(opr[0])
            src = set().union(*opr[1:]) if len(opr) > 1 else set()
            if base.startswith('v_permlane') and 'swap' in base:
                dst = opr[0] | opr[1]
                src = opr[0] | opr[1]
            if base in ('v_fmac_f32', 'v_dot2c_f32_bf16', 'v_pk_fmac_f16', 'v_writelane_b32'):
                src |= opr[0]
            if '_dpp' in op:
                src |= opr[0]
            if base in ('v_add_co_u32', 'v_addc_co_u32', 'v_sub_co_u32', 'v_subb_co_u32'):
                dst = opr[0] | opr[1]
                src = set().union(*opr[2:])
            if base.startswith('v_cmpx'):
                dst |= {('exec', 0)}
        elif op.startswith('ds_read') or op.startswith('ds_bpermute') or op.startswith('ds_swizzle') or op.startswith('ds_add_rtn'):
            kind = 'ds'
            dst = opr[0]
            src = set().union(*opr[1:])
        elif op.startswith('ds_'):
            kind = 'ds'
            src = allr
        elif op.startswith('buffer_load') or op.startswith('global_load'):
            if ' lds' in t or '_lds_' in op:
                kind = 'dma'
                src = allr | {('m0', 0)}
            else:
                kind = 'vload'
                dst = opr[0]
                src = set().union(*opr[1:])
                if '_d16' in op:
                    src |= opr[0]
        elif op.startswith('buffer_store') or op.startswith('global_store'):
            kind = 'vstore'
            src = allr
        elif op.startswith('buffer_atomic') or op.startswith('global_atomic'):
            kind = 'vload' if ' sc0' in t else 'vstore'
            src = allr
            if kind == 'vload':
                dst = opr[0]
        elif op in ('buffer_wbl2', 'buffer_inv'):
            kind = 'vstore'
        elif op.startswith('s_load') or op.startswith('s_buffer_load') or op in ('s_memtime', 's_memrealtime'):
            kind = 'smem'
            dst = opr[0]
            src = set().union(*opr[1:]) if len(opr) > 1 else set()
        elif op == 's_waitcnt':
            kind = 'wait'
        elif op == 's_nop':
            kind = 'nop'
        elif op == 's_barrier':
            kind = 'barrier'
        elif op.startswith('s_cbranch') or op in ('s_branch', 's_endpgm', 's_setpc_b64'):
            kind = 'branch'
            src = allr
        elif op.startswith('s_cmp') or op in ('s_setprio', 's_sleep'):
            kind = 'salu'
            src = allr
        elif op.startswith('s_'):
            kind = 'salu'
            dst = opr[0]
            src = set().union(*opr[1:]) if len(opr) > 1 else set()
            if op in ('s_addk_i32', 's_mulk_i32'):
                src |= opr[0]
            if 'saveexec' in op:
                dst = dst | {('exec', 0)}
        elif op.startswith('.'):
            kind = 'directive'
        else:
            raise ValueError('unknown op: ' + text)
        self.kind, self.dst, self.src = kind, dst, src


class Need:
    def __init__(self, regs='', tags=()):
        self.regs = set(regs_of(regs)) if isinstance(regs, str) else set(regs)
        self.tags = set(tags)


class Reset:
    pass


class Prog:
    def __init__(self):
        self.items = []

    def __call__(self, text, tag=None):
        for line in text.split('\n'):
            line = line.strip()
            if line and not line.startswith(';'):
                self.items.append(Ins(line, tag))

    def add(self, x):
        if isinstance(x, str):
            self(x)
        elif isinstance(x, (list, tuple)):
            for y in x:
                self.add(y)
        else:
            self.items.append(x)

    def resolve_waits(self, verbose=False):
        out = []
        vm, lg = [], []
        stats = dict(auto=0, need=0, maxvm=0, maxlg=0)

        def emit_wait(nvm, nlg, why):
            parts = []
            if nvm is not None:
                nvm = min(nvm, 63)
                parts.append(f'vmcnt({nvm})')
                del vm[:len(vm) - nvm if nvm < len(vm) else 0]
            if nlg is not None:
                nlg = min(nlg, 15)
                parts.append(f'lgkmcnt({nlg})')
                del lg[:len(lg) - nlg if nlg < len(lg) else 0]
            w = Ins('s_waitcnt ' + ' '.join(parts))
            w.note = why
            out.append(w)
            stats[why] += 1

        def needed(regs, tags):
            nvm = nlg = None
            for i in range(len(vm) - 1, -1, -1):
                if (vm[i].dst & regs) or (vm[i].tag in tags):
                    nvm = len(vm) - 1 - i
                    break
            for i in range(len(lg) - 1, -1, -1):
                if (lg[i].dst & regs) or (lg[i].tag in tags):
                    nlg = len(lg) - 1 - i
                    break
            if nlg is not None and any(x.kind == 'smem' for x in lg):
                nlg = 0
            return nvm, nlg

        for it in self.items:
            if isinstance(it, Reset):
                vm.clear()
                lg.clear()
                continue
            if isinstance(it, Need):
                nvm, nlg = needed(it.regs, it.tags)
                if nvm is not None or nlg is not None:
                    emit_wait(nvm, nlg, 'need')
                continue
            if it.kind == 'wait':
                m = re.search(r'vmcnt\((\d+)\)', it.text)
                if m:
                    n = int(m.group(1))
                    del vm[:max(0, len(vm) - n)]
                m = re.search(r'lgkmcnt\((\d+)\)', it.text)
                if m:
                    n = int(m.group(1))
                    del lg[:max(0, len(lg) - n)]
                out.append(it)
                continue
            nvm, nlg = needed(it.src | (set() if it.tag == 'pf' else it.dst), ())
            if nvm is not None or nlg is not None:
                emit_wait(nvm, nlg, 'auto')
                if verbose:
                    print('auto wait before', it.text)
            if it.kind in ('ds', 'smem') and len(lg) >= 15:
                emit_wait(None, 14 if not any(x.kind == 'smem' for x in lg) else 0, 'auto')
            if it.kind in ('vload', 'vstore', 'dma') and len(vm) >= 63:
                emit_wait(62, None, 'auto')
            out.append(it)
            if it.kind in ('vload', 'vstore', 'dma'):
                vm.append(it)
                stats['maxvm'] = max(stats['maxvm'], len(vm))
            elif it.kind in ('ds', 'smem'):
                lg.append(it)
                stats['maxlg'] = max(stats['maxlg'], len(lg))
        self.items = out
        return stats

    def fix_hazards(self, verbose=False):
        out = []
        nins = 0

        def states(x):
            if x.kind == 'nop':
                return int(x.text.split()[1], 0) + 1
            if x.kind in ('label', 'directive'):
                return 0
            return 1

        VEC = ('v', 'a')
        for it in self.items:
            if it.kind in ('label', 'directive', 'nop', 'wait', 'barrier'):
                out.append(it)
                continue
            need = 0
            dist = 0
            why = None
            isvalu = it.kind in ('valu', 'trans')
            ismem = it.kind in ('vload', 'vstore', 'dma', 'ds')
            isvmem = it.kind in ('vload', 'vstore', 'dma')
            for p in reversed(out[-40:]):
                if dist >= 20:
                    break
                req = 0
                pv = p.kind in ('valu', 'trans')
                if p.kind == 'mfma':
                    big = {8: 12, 4: 8}[p.passes]
                    ovc = {8: 10, 4: 6}[p.passes]
                    war = {8: 7, 4: 3}[p.passes]
                    if it.kind == 'mfma':
                        if p.dst & it.srcAB:
                            req = big
                        elif p.dst & it.srcC and not (p.dst == it.srcC and p.passes == it.passes):
                            req = ovc
                        elif p.dst & it.dst and not (p.dst == it.srcC):
                            req = ovc
                    elif isvalu or ismem:
                        if p.dst & (it.src | it.dst):
                            req = big
                        if isvalu and (p.srcC & it.dst):
                            req = max(req, war)
                elif pv:
                    vd = {r for r in p.dst if r[0] in VEC}
                    sd = p.dst - vd
                    if it.kind == 'mfma':
                        if vd & it.src:
                            req = 2
                        if ('exec', 0) in sd:
                            req = max(req, 4)
                    if isvalu:
                        if p.kind == 'trans' and it.kind != 'trans' and (vd & it.src):
                            req = max(req, 1)
                        if (it.op.startswith('v_permlane') or '_dpp' in it.op) and (vd & it.src):
                            req = max(req, 2)
                        if (it.op.startswith('v_readfirstlane') or it.op.startswith('v_readlane')) and (vd & it.src):
                            req = max(req, 1)
                        if sd & it.src:
                            req = max(req, 4 if it.op.startswith(('v_readlane', 'v_writelane')) else 2)
                        if ('exec', 0) in sd and ('_dpp' in it.op or it.op.startswith(('v_permlane', 'v_read', 'v_write'))):
                            req = max(req, 5)
                    if isvmem and (sd & it.src):
                        req = max(req, 5)
                    if it.kind in ('salu', 'branch', 'smem') and (sd & it.src):
                        req = max(req, 4)
                    if it.op in ('s_cbranch_vccz', 's_cbranch_vccnz') and ('vcc', 0) in sd:
                        req = max(req, 5)
                elif p.kind == 'salu':
                    if ('m0', 0) in p.dst and it.kind == 'dma':
                        req = 1
                    if ('exec', 0) in p.dst and ('_dpp' in it.op or it.op.startswith('v_permlane')):
                        req = max(req, 5)
                elif p.kind == 'vstore' and ('x4' in p.op or 'x3' in p.op):
                    if (isvalu or it.kind in ('vload', 'ds', 'mfma')) and (p.src & it.dst):
                        req = 2
                if req - dist > need:
                    need = req - dist
                    why = p
                dist += states(p)
            if need > 0:
                nins += 1
                if verbose:
                    print(f'nop {need}: [{why.text}] -> [{it.text}]')
                while need > 0:
                    k = min(need, 16)
                    out.append(Ins(f's_nop {k - 1}'))
                    need -= k
            out.append(it)
        self.items = out
        return nins

    def text(self):
        return '\n'.join(i.text for i in self.items) + '\n'


def cost(x):
    if isinstance(x, (Need, Reset)):
        return 0
    if isinstance(x, str):
        x = Ins(x)
    return 2 if x.kind == 'trans' else 1


class Weave:
    CAP = 6

    def __init__(self):
        self.mfma = []
        self.sc = []
        self.mem = []
        self.valu = []
        self.post = []

    def add_mfma(self, text):
        self.mfma.append(Ins(text))
        self.sc.append([])
        self.mem.append([])
        self.valu.append([])
        self.post.append([])
        return len(self.mfma) - 1

    def load(self, g):
        extra = max(0, len(self.sc[g]) - 1)
        bar = sum(1 for x in self.sc[g] if isinstance(x, Ins) and x.kind == 'barrier')
        return extra + bar + len(self.mem[g]) + sum(cost(x) for x in self.valu[g])

    def scalar(self, g, x, tag=None):
        self.sc[g].append(Ins(x, tag) if isinstance(x, str) else x)

    def memop(self, g, x, tag=None):
        self.mem[g].append(Ins(x, tag) if isinstance(x, str) else x)

    def free_scalar_gap(self, g, limit=None):
        while self.sc[g]:
            g += 1
            assert limit is None or g <= limit, 'no free scalar slot'
        return g

    def stream(self, g0, g1, items, cap=None):
        cap = cap or self.CAP
        g = g0
        for x in items:
            x = Ins(x) if isinstance(x, str) else x
            while g < g1 and self.load(g) + cost(x) > cap:
                g += 1
            self.valu[g].append(x)
        return g

    def emit(self, prog, lo=0, hi=None):
        hi = len(self.mfma) if hi is None else hi
        for g in range(lo, hi):
            prog.add(self.mfma[g])
            for x in self.sc[g]:
                prog.add(x)
            for x in self.mem[g]:
                prog.add(x)
            for x in self.valu[g]:
                prog.add(x)
            for x in self.post[g]:
                prog.add(x)

    def report(self, name=''):
        over = [(g, self.load(g)) for g in range(len(self.mfma)) if self.load(g) > self.CAP]
        tot = sum(max(0, l - self.CAP) for _, l in over)
        print(f'{name}: {len(self.mfma)} mfma, {len(over)} overfull gaps, {tot} excess units', over[:24])


def kernel_text(name, prog, vgprs, agprs, sgprs=96):
    acc = (vgprs + 3) // 4 * 4
    nfv = acc + agprs if agprs else vgprs
    code = f""".text
.globl {name}
.p2align 8
.type {name},@function
{name}:
{prog.text()}"""
    desc = f""".section .rodata,"a"
.p2align 6
.amdhsa_kernel {name}
  .amdhsa_next_free_vgpr {nfv}
  .amdhsa_next_free_sgpr {sgprs}
  .amdhsa_accum_offset {acc}
  .amdhsa_group_segment_fixed_size 0
  .amdhsa_kernarg_size 112
  .amdhsa_user_sgpr_count 2
  .amdhsa_user_sgpr_kernarg_segment_ptr 1
  .amdhsa_system_sgpr_workgroup_id_x 1
.end_amdhsa_kernel
"""
    return code, desc
```

```python
from asmgen import *
from layout import *
from k_small import srd, srd_off

L = 4
RING0 = 65536
SLOT = 12288
VOTE = 131072
MOFF = 40.0
LMAX = 2.0 ** 70

vWe, vWo = 224, 225
vK = [226, 227, 228, 229]
vV = 230
vWd = [231, 232, 233]
vKd = [234, 235, 236]
vVd = 237
vL16 = 238
vl = [[239, 240], [241, 242]]
vm = [243, 244]
vt = 245
vri = [246, 247]
vt2 = 248
SB = [128, 160]
CB = 192
QA = 128
AR = 224
sW, sK, sV, sH, sO = 8, 12, 16, 20, 24
sWv3072, sWv1024, sOff, sH0, sH1, sO0, sO1, sRedo, sWave = 28, 29, 30, 31, 32, 33, 34, 35, 36


def slot_of(j):
    return (j + 4) % 8


def acc(t, g):
    return (SB[t] if t < 2 else (t - 2) * 32) + 16 * g


def softmax_items(b, i, raw):
    E, A = [], []
    for g in range(2):
        for p in range(8):
            r0 = b + 16 * g + 2 * p
            for r in (r0, r0 + 1):
                E.append(([f'v_add_f32 v{r}, v{vm[g]}, v{r}'] if raw else []) + [f'v_exp_f32 v{r}, v{r}'])
            ne = len(E)
            A.append((ne - 1, f'v_add_f32 v{vl[g][0]}, v{vl[g][0]}, v{r0}'))
            A.append((ne, f'v_add_f32 v{vl[g][1]}, v{vl[g][1]}, v{r0 + 1}'))
            u = 2 * i + p // 4
            if g == 0:
                A.append((ne, f'v_cvt_pk_bf16_f32 v{4 * u + p % 4}, v{r0}, v{r0 + 1}'))
            else:
                d = b + 16 + 8 * (p // 4) + p % 4
                A.append((ne, f'v_cvt_pk_bf16_f32 v{d}, v{r0}, v{r0 + 1}'))
                A.append((ne, f'v_accvgpr_write_b32 a{4 * u + p % 4}, v{d}'))
    return E, A


def place_softmax(w, g0, g1, E, A, cap=6):
    ne = 0
    last_was_exp = False
    ei = ai = 0
    for g in range(g0, g1 + 1):
        last = g == g1
        last_was_exp = False
        while ei < len(E) or ai < len(A):
            c = cap - w.load(g)
            a_ready = ai < len(A) and (A[ai][0] < ne or (A[ai][0] == ne and not last_was_exp))
            ecost = (len(E[ei]) + 1) if ei < len(E) else 99
            backlog = sum(1 for k in range(ai, len(A)) if A[k][0] <= ne)
            pick = None
            if a_ready and c >= 1 and (backlog >= 4 or c < ecost or (c % 2 == 1 and ecost == 2)):
                pick = 'a'
            elif ei < len(E) and c >= ecost:
                pick = 'e'
            elif a_ready and c >= 1:
                pick = 'a'
            elif last:
                pick = 'a' if (a_ready or ei >= len(E)) else 'e'
            if pick is None:
                break
            if pick == 'a':
                w.valu[g].append(Ins(A[ai][1]))
                ai += 1
                last_was_exp = False
            else:
                for x in E[ei]:
                    w.valu[g].append(Ins(x))
                ei += 1
                ne += 1
                last_was_exp = True
        if ei >= len(E) and ai >= len(A):
            return g
    return g1


def gen_att(prof=False, nt_w=' nt', st_flag=' sc1', PRO=3):
    p = Prog()
    p(f"""
    s_cmp_ge_u32 s2, 256
    s_cbranch_scc1 L_att_end
    s_load_dwordx4 s[40:43], s[0:1], 8
    s_load_dwordx2 s[44:45], s[0:1], 24
    s_load_dwordx2 s[46:47], s[0:1], 104
    """)
    if prof:
        p('s_memtime s[60:61]')
        p('s_memrealtime s[72:73]')
    p(f"""
    v_lshrrev_b32 v1, 6, v0
    v_and_b32 v2, 63, v0
    v_readfirstlane_b32 s{sWave}, v1
    s_and_b32 s3, s2, 7
    s_lshl_b32 s3, s3, 2
    s_lshr_b32 s4, s2, 3
    s_and_b32 s4, s4, 3
    s_add_u32 s3, s3, s4
    s_lshr_b32 s4, s2, 5
    v_lshlrev_b32 v{vL16}, 4, v2
    s_mul_i32 s{sWv3072}, s{sWave}, 3072
    s_lshl_b32 s{sWv1024}, s{sWave}, 10
    s_lshl_b32 s5, s4, 3
    s_lshl_b32 s6, s{sWave}, 1
    s_add_u32 s5, s5, s6
    s_mov_b32 s{sRedo}, 0
    """)
    p(f'v_mul_u32_u24 v3, 192, v1')
    p(f'v_add_u32 v3, v3, v2')
    for n in range(3):
        p(f"""
        v_add_u32 v4, {64 * n}, v3
        v_mul_u32_u24 v5, 2731, v4
        v_lshrrev_b32 v5, 16, v5
        v_mul_u32_u24 v6, 24, v5
        v_sub_u32 v6, v4, v6
        v_lshrrev_b32 v7, 1, v5
        v_and_b32 v8, 1, v7
        v_lshlrev_b32 v8, 2, v8
        v_xor_b32 v8, v8, v6
        v_mul_u32_u24 v9, 12288, v5
        v_lshl_add_u32 v9, v8, 4, v9
        v_subrev_u32 v{vWd[n]}, {1024 * n}, v9
        v_and_b32 v8, 7, v7
        v_xor_b32 v8, v8, v6
        v_mul_u32_u24 v9, 384, v5
        v_lshl_add_u32 v9, v8, 4, v9
        v_subrev_u32 v{vKd[n]}, {1024 * n}, v9
        """)
    p('s_waitcnt lgkmcnt(0)')
    p(f's_mul_i32 s6, s3, 384')
    p(f's_sub_u32 s7, {640 * 12288}, s6')
    p(f's_add_u32 s{sW}, s44, s6\ns_addc_u32 s{sW + 1}, s45, 0\ns_mov_b32 s{sW + 2}, s7\ns_mov_b32 s{sW + 3}, 0x20000')
    p(f's_mul_i32 s6, s5, 40960')
    p(f's_add_u32 s6, s6, {WS_H}')
    srd_off(p, sH, 46, 's6', 81920)

    def ring_dma(j):
        seq = [('s', f's_add_u32 m0, s{sWv3072}, {RING0 + slot_of(j) * SLOT}')]
        if j < 20:
            seq.append(('s', f's_mov_b32 s{sOff}, {j * 32 * 12288}'))
            for n in range(3):
                seq.append(('m', f'buffer_load_dwordx4 v{vWd[n]}, s[{sW}:{sW + 3}], s{sOff} offen offset:{1024 * n}{nt_w} lds', ('st', j)))
        else:
            seq.append(('s', f's_mov_b32 s{sOff}, {(j - 20) * 12288}'))
            for n in range(3):
                seq.append(('m', f'buffer_load_dwordx4 v{vKd[n]}, s[{sK}:{sK + 3}], s{sOff} offen offset:{1024 * n}{nt_w} lds', ('st', j)))
        return seq

    def v_dma(sl, q):
        base = 65536 if sl == 1 else 0
        return [('s', f's_add_u32 m0, s{sWv1024}, {base + q * 4096}'),
                ('s', f's_mov_b32 s{sOff}, {q * 12288 + sl * 128}'),
                ('m', f'buffer_load_dwordx4 v{vVd}, s[{sV}:{sV + 3}], s{sOff} offen{nt_w} lds', ('v', sl))]

    def h_load(s):
        seq = []
        if s % 4 == 0:
            seq.append(('s', f's_mov_b32 s{sH0}, {s * 1024}'))
            seq.append(('s', f's_mov_b32 s{sH1}, {40960 + s * 1024}'))
        for g in range(2):
            r = 4 * ((2 * s + g) % 32)
            seq.append(('m', f'buffer_load_dwordx4 a[{r}:{r + 3}], v{vL16}, s[{sH}:{sH + 3}], s{[sH0, sH1][g]} offen offset:{(s % 4) * 1024}', None))
        return seq

    for j in range(PRO):
        for x in ring_dma(j) + h_load(2 * j) + h_load(2 * j + 1):
            p(x[1], x[2] if x[0] == 'm' else None)

    p(f's_mul_i32 s6, s3, 786432')
    p(f's_add_u32 s6, s6, {1536 * 384}')
    srd_off(p, sK, 40, 's6', 196608)
    srd_off(p, sV, 42, 's6', 196608)
    p(f's_mul_i32 s6, s5, 393216')
    p(f's_mul_i32 s7, s3, 12288')
    p(f's_add_u32 s6, s6, s7')
    p(f's_add_u32 s6, s6, {WS_O}')
    srd_off(p, sO, 46, 's6', 393216 + 12288)
    kb0 = RING0
    p(f"""
    v_lshrrev_b32 v3, 5, v2
    v_lshrrev_b32 v4, 4, v2
    v_and_b32 v4, 1, v4
    v_lshrrev_b32 v5, 2, v2
    v_and_b32 v5, 3, v5
    v_and_b32 v6, 3, v2
    v_lshrrev_b32 v7, 1, v5
    """)
    p(f"""
    v_lshl_add_u32 v8, v3, 3, v5
    v_mul_u32_u24 v8, 384, v8
    v_and_b32 v9, 1, v6
    v_lshlrev_b32 v9, 4, v9
    v_lshrrev_b32 v10, 1, v6
    v_lshl_add_u32 v9, v10, 3, v9
    v_lshl_add_u32 v9, v4, 5, v9
    v_add_u32 v8, v8, v9
    v_add_u32 v8, {kb0}, v8
    v_lshl_add_u32 v{vWe}, v7, 6, v8
    v_xor_b32 v10, 1, v7
    v_lshl_add_u32 v{vWo}, v10, 6, v8
    v_lshl_add_u32 v8, v3, 2, v5
    v_lshlrev_b32 v8, 7, v8
    v_lshl_add_u32 v8, v7, 6, v8
    v_lshl_add_u32 v8, v4, 5, v8
    v_lshl_add_u32 v{vV}, v6, 3, v8
    v_and_b32 v8, 31, v2
    v_lshrrev_b32 v9, 1, v8
    v_and_b32 v9, 7, v9
    v_mul_u32_u24 v8, 384, v8
    v_add_u32 v8, {kb0}, v8
    """)
    for t in range(4):
        p(f"""
        v_add_u32 v10, {2 * t}, v3
        v_xor_b32 v10, v10, v9
        v_lshl_add_u32 v{vK[t]}, v10, 4, v8
        """)
    p(f"""
    v_lshrrev_b32 v8, 3, v2
    v_mul_u32_u24 v8, 384, v8
    v_and_b32 v9, 7, v2
    v_lshlrev_b32 v10, 2, v4
    v_xor_b32 v9, v9, v10
    v_lshl_add_u32 v8, v9, 4, v8
    v_add_u32 v{vVd}, s{sWv3072}, v8
    v_mov_b32 v{vl[0][0]}, 0
    v_mov_b32 v{vl[0][1]}, 0
    v_mov_b32 v{vl[1][0]}, 0
    v_mov_b32 v{vl[1][1]}, 0
    v_mov_b32 v{vm[0]}, 0xff800000
    v_mov_b32 v{vm[1]}, 0xff800000
    """)

    frags = []
    for j in range(18):
        for sp in range(2):
            for t in range(6):
                frags.append(dict(k='w', st=j, sp=sp, t=t))
    for t in range(6):
        for j in (18, 19):
            for sp in range(2):
                frags.append(dict(k='w', st=j, sp=sp, t=t))
    for i in range(16):
        for s in range(12):
            frags.append(dict(k='k', st=20 + i, i=i, s=s))
    for t in range(6):
        for u in range(32):
            frags.append(dict(k='v', t=t, u=u))
    NF = len(frags)
    w = Weave()
    for n, f in enumerate(frags):
        A = f'a[{AR + 4 * (n % 8)}:{AR + 4 * (n % 8) + 3}]'
        for g in range(2):
            if f['k'] == 'w':
                s = 2 * f['st'] + f['sp']
                d = acc(f['t'], g)
                hb = 4 * ((2 * s + g) % 32)
                B = f'a[{hb}:{hb + 3}]'
                C = '0' if s == 0 else f'v[{d}:{d + 15}]'
            elif f['k'] == 'k':
                d = SB[f['i'] % 2] + 16 * g
                qb = QA + 4 * (12 * g + f['s'])
                B = f'a[{qb}:{qb + 3}]'
                if f['s'] == 0:
                    C = '0' if f['i'] < 2 else f'v[{CB + 16 * g}:{CB + 16 * g + 15}]'
                else:
                    C = f'v[{d}:{d + 15}]'
            else:
                d = SB[f['t'] % 2] + 16 * g
                B = f"{'va'[g]}[{4 * f['u']}:{4 * f['u'] + 3}]"
                C = '0' if f['u'] == 0 else f'v[{d}:{d + 15}]'
            w.add_mfma(f'v_mfma_f32_32x32x16_bf16 v[{d}:{d + 15}], {A}, {B}, {C}')
    NG = 2 * NF

    state = dict(wb=RING0, kb=RING0, vx=0)
    state_at = {}
    pre = Prog()

    def read_texts(n):
        f = frags[n]
        ar = AR + 4 * (n % 8)
        fix, rd = [], []
        if f['k'] in 'wk':
            so = RING0 + slot_of(f['st']) * SLOT
            key = 'wb' if f['k'] == 'w' else 'kb'
            cur = state[key]
            if not (0 <= so - cur and so - cur + SLOT <= 65536):
                if f['k'] == 'w' and f['st'] >= 18:
                    nb = RING0 + slot_of(18) * SLOT
                else:
                    nb = RING0 if slot_of(f['st']) < 5 else RING0 + 3 * SLOT
                for r in ([vWe, vWo] if f['k'] == 'w' else vK):
                    fix.append(f'v_add_u32 v{r}, {(nb - cur) & 0xffffffff}, v{r}')
                state[key] = cur = nb
            if f['k'] == 'w':
                for x in range(2):
                    off = so - cur + (f['t'] // 2) * 128 + (16 * f['sp'] + 4 * x) * 384
                    rd.append(f"ds_read_b64_tr_b16 a[{ar + 2 * x}:{ar + 2 * x + 1}], v{[vWe, vWo][f['t'] % 2]} offset:{off}")
            else:
                off = so - cur + (f['s'] // 4) * 128
                rd.append(f"ds_read_b128 a[{ar}:{ar + 3}], v{vK[f['s'] % 4]} offset:{off}")
        else:
            want = (65536 if f['t'] // 2 == 1 else 0) | (64 if f['t'] % 2 else 0)
            if want != state['vx']:
                fix.append(f"v_xor_b32 v{vV}, {want ^ state['vx']}, v{vV}")
                state['vx'] = want
            for x in range(2):
                rd.append(f"ds_read_b64_tr_b16 a[{ar + 2 * x}:{ar + 2 * x + 1}], v{vV} offset:{2048 * f['u'] + 1024 * x}")
        return fix, rd

    rdtext = {}
    for n in range(NF):
        state_at[n] = dict(state)
        fix, rd = read_texts(n)
        rdtext[n] = rd
        if n < L:
            for x in fix + rd:
                pre(x)
        else:
            g = 2 * (n - L)
            for x in fix:
                w.valu[g - 1].append(Ins(x))
            for k, x in enumerate(rd):
                w.memop(g + k, x)
    state_at[NF] = dict(state)

    first = {}
    last = {}
    for n, f in enumerate(frags):
        if 'st' in f:
            first.setdefault(f['st'], n)
            last[f['st']] = n
    NPV = 240 + 192
    bars = {}
    for j in range(1, 36):
        if j == 19:
            continue
        bars[first[j]] = [('st', j)] + ([('st', 19)] if j == 18 else [])
    bars[first[35]].append(('v', 0))
    X1 = NPV + 22 + L
    X2 = NPV + 64 + L + 1
    X3 = NPV + 128
    bars[X1] = [('v', 1), 'vote']
    bars[X2] = []
    bars[X3] = [('v', 2)]
    for n in range(1, NF):
        regs = w.mfma[2 * n].srcAB | w.mfma[2 * n + 1].srcAB
        tags = bars.get(n + L, [])
        w.scalar(2 * n - 1, Need(regs, tags))
    for nb in bars:
        w.scalar(2 * (nb - L), 's_barrier')

    cur = dict(m0=0, h=0)
    vm_gap = set()
    issued = []

    def place_seq(g, seq, chan, rec=False):
        g = max(g, cur[chan])
        lastsc = -1
        for x in seq:
            if x[0] == 's':
                g = w.free_scalar_gap(g)
                w.scalar(g, x[1])
                lastsc = g
            else:
                if g <= lastsc:
                    g = lastsc + 1
                while g in vm_gap or (480 <= g < 2 * NPV - 2 * L and g % 2 == 0):
                    g += 1
                w.memop(g, x[1], x[2])
                vm_gap.add(g)
            if rec:
                issued.append((g, x))
        cur[chan] = g + 1
        return g

    nxt = PRO
    hn = 2 * PRO
    vq = [0, 0, 0]
    barlist = [L] + sorted(bars)
    for nb in barlist:
        g = 2 * (nb - L) + 1
        done = nb - L
        cnt = 0
        while nxt < 36 and cnt < 2 and (nxt < 8 or last[nxt - 8] <= done) and first[nxt] <= nb + 6 * 12 + 1:
            place_seq(g, ring_dma(nxt), 'm0', rec=nxt >= 21)
            nxt += 1
            cnt += 1
        cnt = 0
        while hn < 40 and cnt < 3 and hn < nb // 6 + 13:
            place_seq(g, h_load(hn), 'h')
            hn += 1
            cnt += 1
        if hn >= 40 and cnt == 0 and nb < 240:
            for _ in range(7 if nb >= first[18] else 3):
                if vq[0] < 16:
                    assert place_seq(g, v_dma(0, vq[0]), 'm0') < 480
                    vq[0] += 1
        if nxt >= 36:
            while vq[1] < 16 and last[28 + vq[1] // 3] <= done:
                place_seq(g, v_dma(1, vq[1]), 'm0')
                vq[1] += 1
        if nb == X2:
            for q in range(16):
                place_seq(g, v_dma(2, q), 'm0')
    assert vq[0] == 16 and vq[1] == 16 and hn == 40 and nxt == 36, (vq, hn, nxt)

    g = 0
    for t in range(6):
        gl = 2 * (216 + 4 * t + 3) + 1
        items = []
        for f2 in range(2):
            for gq in range(2):
                b = acc(t, gq) + 8 * f2
                for d in range(4):
                    items.append(f'v_cvt_pk_bf16_f32 v{b + d}, v{b + 2 * d}, v{b + 2 * d + 1}')
                for d in range(4):
                    items.append(f'v_accvgpr_write_b32 a{QA + 4 * (12 * gq + 2 * t + f2) + d}, v{b + d}')
        g = w.stream(max(g, gl + 4), NG - 1, items)
        assert g <= 480 + 4 * t - 2, (t, g)

    M = lambda i: 480 + 24 * i
    items = []
    for gq in range(2):
        b = SB[0] + 16 * gq
        for k in range(8):
            items.append(f'v_max3_f32 v{vm[gq]}, v{vm[gq]}, v{b + 2 * k}, v{b + 2 * k + 1}')
    items += [f'v_mov_b32 v{vt}, v{vm[0]}', f'v_mov_b32 v{vt2}, v{vm[1]}', 's_nop 0',
              f'v_permlane32_swap_b32 v{vm[0]}, v{vt}', f'v_permlane32_swap_b32 v{vm[1]}, v{vt2}',
              f'v_max_f32 v{vm[0]}, v{vm[0]}, v{vt}', f'v_max_f32 v{vm[1]}, v{vm[1]}, v{vt2}',
              f'v_sub_f32 v{vm[0]}, {f2h(-MOFF)}, v{vm[0]}', f'v_sub_f32 v{vm[1]}, {f2h(-MOFF)}, v{vm[1]}']
    for gq in range(2):
        for k in range(16):
            items.append(f'v_mov_b32 v{CB + 16 * gq + k}, v{vm[gq]}')
    g = w.stream(M(1) + 2, M(1) + 23, items, cap=10)
    E, A = softmax_items(SB[0], 0, True)
    place_softmax(w, g, M(1) + 23, E, A, cap=10)
    E, A = softmax_items(SB[1], 1, True)
    place_softmax(w, M(2), M(2) + 23, E, A, cap=7)
    for i in range(2, 15):
        E, A = softmax_items(SB[i % 2], i, False)
        place_softmax(w, M(i + 1), M(i + 1) + 23, E, A)
    E, A = softmax_items(SB[1], 15, False)
    g = place_softmax(w, M(16), M(16) + 30, E, A)
    items = [f'v_add_f32 v{vl[0][0]}, v{vl[0][0]}, v{vl[0][1]}', f'v_add_f32 v{vl[1][0]}, v{vl[1][0]}, v{vl[1][1]}',
             f'v_mov_b32 v{vl[0][1]}, v{vl[0][0]}', f'v_mov_b32 v{vl[1][1]}, v{vl[1][0]}',
             f'v_mov_b32 v{vt}, {f2h(LMAX)}', f'v_mov_b32 v{vt2 + 4}, {VOTE}',
             f'v_permlane32_swap_b32 v{vl[0][0]}, v{vl[0][1]}', f'v_permlane32_swap_b32 v{vl[1][0]}, v{vl[1][1]}',
             f'v_add_f32 v{vl[0][0]}, v{vl[0][0]}, v{vl[0][1]}', f'v_add_f32 v{vl[1][0]}, v{vl[1][0]}, v{vl[1][1]}',
             f'v_cmp_nle_f32 s[48:49], v{vl[0][0]}, v{vt}', f'v_cmp_nle_f32 s[50:51], v{vl[1][0]}, v{vt}',
             f'v_rcp_f32 v{vri[0]}, v{vl[0][0]}', f'v_rcp_f32 v{vri[1]}, v{vl[1][0]}',
             f'v_lshl_add_u32 v{vt2 + 5}, s{sWave}, 2, v{vt2 + 4}',
             's_or_b64 s[48:49], s[48:49], s[50:51]', 's_or_b32 s48, s48, s49',
             f'v_mov_b32 v{vt}, s48']
    g = w.stream(g + 1, NG - 1, items)
    w.memop(g + 1, f'ds_write_b32 v{vt2 + 5}, v{vt}', 'vote')
    assert g + 1 < 2 * (X1 - L) - 1, (g, X1)
    gx = 2 * (X1 - L)
    w.memop(gx + 1, f'ds_read_b128 v[{vt2}:{vt2 + 3}], v{vt2 + 4}')
    items = [f'v_or3_b32 v{vt2}, v{vt2}, v{vt2 + 1}, v{vt2 + 2}', f'v_or_b32 v{vt2}, v{vt2}, v{vt2 + 3}', 's_nop 0',
             f'v_readfirstlane_b32 s48, v{vt2}']
    g = w.stream(gx + 10, NG - 1, items)
    gbr = 2 * (NPV + 32) - 1
    assert g + 2 < gbr
    w.post[gbr - 1] += [Ins(f's_andn2_b32 s48, s48, s{sRedo}')]
    w.post[gbr] += [Ins('s_cmp_lg_u32 s48, 0'), Ins('s_cbranch_scc1 L_att_redo')]

    def epi_items(t):
        out = []
        for gq in range(2):
            for f2 in range(2):
                b = SB[t % 2] + 16 * gq + 8 * f2
                it = [f'v_mul_f32 v{b + k}, v{vri[gq]}, v{b + k}' for k in range(8)]
                it += [f'v_cvt_pk_bf16_f32 v{b + d}, v{b + 2 * d}, v{b + 2 * d + 1}' for d in range(4)]
                st = f'buffer_store_dwordx4 v[{b}:{b + 3}], v{vL16}, s[{sO}:{sO + 3}], s{[sO0, sO1][gq]} offen offset:{(t % 2) * 2048 + f2 * 1024}{st_flag}'
                out.append((it, st))
        return out

    def osal(t):
        return [f's_mov_b32 s{sO0}, {(t // 2) * 4096}', f's_mov_b32 s{sO1}, {393216 + (t // 2) * 4096}']

    for t in range(5):
        g0 = 2 * (NPV + 32 * (t + 1))
        g = g0
        if t % 2 == 0:
            for x in osal(t):
                g = w.free_scalar_gap(g)
                w.scalar(g, x)
        g = g0 + 4
        for it, st in epi_items(t):
            g = w.stream(g, NG - 1, it, cap=4)
            g += 1
            while g in vm_gap:
                g += 1
            w.memop(g, st)
            vm_gap.add(g)
            g += 4
        assert g < g0 + 60

    w.report('att')
    if prof:
        for k, gg in enumerate([0, 479, 863]):
            w.post[gg] += [Ins(f's_memtime s[{62 + 2 * k}:{63 + 2 * k}]'), Ins('s_waitcnt lgkmcnt(0)')]

    w.post[M(1) - 1].append(Ins('L_att_t1:'))
    p.add(Need('', [('st', 0)]))
    p('s_barrier')
    p.add(pre.items)
    p.add(Need(w.mfma[0].srcAB | w.mfma[1].srcAB))
    w.emit(p)
    for it, st in epi_items(5):
        p.add(it)
        p(st)
    if prof:
        p(f"""
        s_memtime s[68:69]
        s_waitcnt vmcnt(0) lgkmcnt(0)
        s_memtime s[70:71]
        s_memrealtime s[74:75]
        s_waitcnt lgkmcnt(0)
        s_lshl_b32 s6, s2, 2
        s_add_u32 s6, s6, s{sWave}
        s_lshl_b32 s6, s6, 5
        s_add_u32 s6, s6, 0x8000000
        """)
        srd_off(p, 52, 46, 's6', 32)
        for k in range(5):
            p(f's_sub_u32 s{62 + 2 * k}, s{62 + 2 * k}, s60')
            p(f'v_mov_b32 v{k}, s{62 + 2 * k}')
        p('v_mov_b32 v8, 0')
        p('v_mov_b32 v5, s72')
        p('v_mov_b32 v6, s74')
        p('buffer_store_dwordx4 v[0:3], v8, s[52:55], 0 offen')
        p('buffer_store_dwordx4 v[4:7], v8, s[52:55], 0 offen offset:16')
    p('L_att_end:')
    p('s_endpgm')

    n1 = 240 + 12
    s_br = state_at[NPV + 32 + L]
    s_t1 = state_at[n1]
    assert state_at[n1 + L]['kb'] == state_at[n1 + 1]['kb']
    kb_t1 = state_at[n1 + L]['kb']
    p('L_att_redo:')
    p('s_waitcnt vmcnt(0) lgkmcnt(0)')
    p.add(Reset())
    p(f"""
    s_nop 15
    s_barrier
    s_mov_b32 s{sRedo}, -1
    v_mov_b32 v{vl[0][0]}, 0
    v_mov_b32 v{vl[0][1]}, 0
    v_mov_b32 v{vl[1][0]}, 0
    v_mov_b32 v{vl[1][1]}, 0
    v_mov_b32 v{vm[0]}, 0xff800000
    v_mov_b32 v{vm[1]}, 0xff800000
    v_lshrrev_b32 v{vt}, 4, v{vL16}
    v_lshrrev_b32 v{vt2}, 5, v{vt}
    v_and_b32 v{vt}, 31, v{vt}
    v_mul_u32_u24 v{vt}, 384, v{vt}
    v_lshl_add_u32 v{vt}, v{vt2}, 4, v{vt}
    s_mov_b32 s48, {15 * 12288}
    """)
    for r in vK:
        p(f'v_add_u32 v{r}, {(kb_t1 - s_br["kb"]) & 0xffffffff}, v{r}')
    if s_br['vx']:
        p(f'v_xor_b32 v{vV}, {s_br["vx"]}, v{vV}')
    for (g, x) in issued:
        if g < M(1):
            p(x[1])
    p('L_att_redo_loop:')
    for s in range(12):
        p(f'buffer_load_dwordx4 v[{4 * s}:{4 * s + 3}], v{vt}, s[{sK}:{sK + 3}], s48 offen offset:{32 * s}')
    p('s_waitcnt vmcnt(0)')
    for s in range(12):
        for g in range(2):
            d = SB[0] + 16 * g
            qb = QA + 4 * (12 * g + s)
            p(f"v_mfma_f32_32x32x16_bf16 v[{d}:{d + 15}], v[{4 * s}:{4 * s + 3}], a[{qb}:{qb + 3}], {'0' if s == 0 else f'v[{d}:{d + 15}]'}")
    p('s_nop 15')
    for g in range(2):
        b = SB[0] + 16 * g
        for k in range(8):
            p(f'v_max3_f32 v{vm[g]}, v{vm[g]}, v{b + 2 * k}, v{b + 2 * k + 1}')
    p("""
    s_sub_u32 s48, s48, 12288
    s_cbranch_scc0 L_att_redo_loop
    s_barrier
    """)
    for n in range(n1, n1 + L):
        for x in rdtext[n]:
            p(x)
    p("""
    s_waitcnt vmcnt(0) lgkmcnt(0)
    s_nop 7
    s_branch L_att_t1
    """)
    st = p.resolve_waits()
    nn = p.fix_hazards(verbose=True)
    print('att waits', st, 'nops', nn)
    return kernel_text('att_kernel', p, 256, 256, 96), ('att_kernel', 256, 256, 163840)
```

```python
from asmgen import *
from layout import *
from k_small import srd, srd_off
import math

MF = 'v_mfma_f32_16x16x32_bf16'
sWave = 36


def lane_setup(p):
    p(f"""
    v_lshrrev_b32 v1, 6, v0
    v_and_b32 v2, 63, v0
    v_readfirstlane_b32 s{sWave}, v1
    v_and_b32 v3, 15, v0
    v_lshrrev_b32 v4, 4, v2
    v_lshrrev_b32 v5, 2, v3
    v_and_b32 v6, 3, v0
    """)


def prof_begin(p):
    p('s_memtime s[60:61]')
    p('s_memrealtime s[72:73]')


def prof_stamp(k):
    return [Ins(f's_memtime s[{62 + 2 * k}:{63 + 2 * k}]'), Ins('s_waitcnt lgkmcnt(0)')]


def prof_end(p, wsptr, off):
    p(f"""
    s_memtime s[68:69]
    s_waitcnt vmcnt(0) lgkmcnt(0)
    s_memtime s[70:71]
    s_memrealtime s[74:75]
    s_waitcnt lgkmcnt(0)
    s_lshl_b32 s6, s2, 2
    s_add_u32 s6, s6, s{sWave}
    s_lshl_b32 s6, s6, 5
    s_add_u32 s6, s6, {off}
    """)
    srd_off(p, 52, wsptr, 's6', 32)
    for k in range(5):
        p(f's_sub_u32 s{62 + 2 * k}, s{62 + 2 * k}, s60')
        p(f'v_mov_b32 v{k}, s{62 + 2 * k}')
    p('v_mov_b32 v8, 0')
    p('v_mov_b32 v5, s72')
    p('v_mov_b32 v6, s74')
    p('buffer_store_dwordx4 v[0:3], v8, s[52:55], 0 offen')
    p('buffer_store_dwordx4 v[4:7], v8, s[52:55], 0 offen offset:16')


class Mark:
    def __init__(self, name):
        self.name = name


def emit_seq(p, seq):
    for x in seq:
        p(x[1], x[2] if x[0] == 'm' else None)


def step_weave(s, nst, NS, mfmas, reads, dma, needs, rd0, dma0, last_reads=True):
    w = Weave()
    w.CAP = 2
    M = mfmas(s)
    for m in M:
        w.add_mfma(m)
    G = len(M)
    more = (s + 1 < nst) or last_reads
    if more:
        w.scalar(0, 's_barrier')
        g = rd0
        R = reads(s + 1)
        per = 1 if len(R) <= G - rd0 - 1 else 2
        for k, r in enumerate(R):
            w.memop(rd0 + k // per, r)
    for lo, hi in needs:
        if lo > 0:
            regs = set().union(*[w.mfma[i].srcAB for i in range(lo, hi)])
            w.scalar(lo - 1, Need(regs))
    if more:
        lo, hi = needs[0]
        nm = [Ins(x) for x in mfmas(s + 1)]
        regs = set().union(*[nm[i].srcAB for i in range(lo, hi)])
        w.scalar(G - 1, Need(regs, [('st', s + 2)]))
    j = s + NS - 1
    seq = dma(j)
    if seq:
        g = 1
        gm = dma0
        for x in seq:
            if x[0] == 's':
                g = w.free_scalar_gap(g, G - 1)
                w.scalar(g, x[1])
                gm = max(gm, g + 1)
            else:
                while len(w.mem[gm]) >= 2:
                    gm += 1
                w.memop(gm, x[1], x[2])
                g = max(g, gm + 1)
                if len(w.mem[gm]) >= 1 and gm + 1 < G:
                    gm += 1
    return w


def pipeline(p, nst, NS, mfmas, reads, dma, needs, rd0, dma0, body=None, label=None, cnt=None, prof=False):
    p.add(Need('', [('st', 0)]))
    p('s_barrier')
    if prof:
        p.add(prof_stamp(0))
    for r in reads(0):
        p(r)
    m0 = [Ins(x) for x in mfmas(0)]
    lo, hi = needs[0]
    p.add(Need(set().union(*[m0[i].srcAB for i in range(lo, hi)]), [('st', 1)]))
    if body is None:
        for s in range(nst):
            step_weave(s, nst, NS, mfmas, reads, dma, needs, rd0, dma0, last_reads=False).emit(p)
        return
    for it in range(3):
        p.add(Ins(f'L_mark_{it}:'))
        for s in range(it * body, (it + 1) * body):
            w = step_weave(s, 10 ** 9, NS, mfmas, reads, dma, needs, rd0, dma0)
            if s % body == body - 1:
                g = w.free_scalar_gap(2)
                w.scalar(g, f's_sub_u32 s{cnt}, s{cnt}, 1')
                kk = len(w.mfma) - 1
                w.post[kk] += [Ins(f's_cmp_lg_u32 s{cnt}, 0'), Ins(f's_cbranch_scc1 {label}')]
            w.emit(p)
    p.add(Ins('L_mark_3:'))


def fold_loop(p, label):
    idx = {}
    for i, x in enumerate(p.items):
        if x.kind == 'label' and x.text.startswith('L_mark_'):
            idx[int(x.text[7])] = i
    c = [[x.text for x in p.items[idx[k] + 1:idx[k + 1]]] for k in range(3)]
    if not (c[0] == c[1] == c[2]):
        import difflib
        print('\n'.join(difflib.unified_diff(c[0], c[1], lineterm='', n=2)))
        print('\n'.join(difflib.unified_diff(c[1], c[2], lineterm='', n=2)))
        raise AssertionError('loop copies differ')
    p.items = p.items[:idx[0]] + [Ins(label + ':')] + p.items[idx[0] + 1:idx[1]] + p.items[idx[3] + 1:]


def gen_p4(prof=False, st_flag=' sc1', ntw='', NS=8):
    p = Prog()
    SLOT = 16384
    sW, sO, sP = 8, 12, 16
    sM, sKW, sKO, sCnt = 20, 21, 22, 23
    vA = [[128 + 4 * wdw + t for t in range(4)] for wdw in range(2)]
    vB = [136, 137]
    vWd = [138, 139]
    vL16 = 140
    vSt = 141
    p(f"""
    s_cmp_ge_u32 s2, 240
    s_cbranch_scc1 L_p4_end
    s_load_dwordx2 s[40:41], s[0:1], 32
    s_load_dwordx2 s[46:47], s[0:1], 104
    """)
    if prof:
        prof_begin(p)
    lane_setup(p)
    p(f"""
    s_and_b32 s3, s2, 7
    s_lshr_b32 s4, s2, 3
    s_mul_i32 s5, s4, 52
    s_lshr_b32 s5, s5, 8
    s_mul_i32 s6, s5, 5
    s_sub_u32 s4, s4, s6
    s_mul_i32 s3, s3, 6
    s_add_u32 s3, s3, s5
    s_lshr_b32 s5, s3, 4
    s_and_b32 s3, s3, 15
    v_lshlrev_b32 v{vL16}, 4, v2
    """)
    for n in range(2):
        p(f"""
        v_add_u32 v7, {4 * n}, v4
        v_lshlrev_b32 v8, 1, v7
        v_xor_b32 v8, v8, v3
        v_lshl_add_u32 v7, v1, 3, v7
        v_mul_u32_u24 v7, 1280, v7
        v_lshl_add_u32 v7, v8, 4, v7
        v_subrev_u32 v{vWd[n]}, {1024 * n}, v7
        """)
    p(f"""
    s_mul_i32 s6, s5, {2048 * 1280}
    s_lshl_b32 s7, s4, 8
    s_add_u32 s6, s6, s7
    s_sub_u32 s7, {2048 * 1280}, s7
    s_lshl_b32 s24, s3, 2
    s_add_u32 s24, s24, s{sWave}
    s_mul_i32 s24, s24, 393216
    s_lshl_b32 s25, s5, 17
    s_add_u32 s24, s24, s25
    s_add_u32 s24, s24, {WS_O - 2048}
    s_lshl_b32 s{sM}, s{sWave}, 12
    s_mov_b32 s{sKW}, 0
    s_mov_b32 s{sKO}, 0
    s_mov_b32 s{sCnt}, 8
    s_waitcnt lgkmcnt(0)
    """)
    srd_off(p, sW, 40, 's6', 's7')
    srd_off(p, sO, 46, 's24', 131072 + 2048)

    def dma(j):
        seq = [('s', f's_add_u32 m0, s{sM}, {(j % NS) * SLOT}')]
        for n in range(2):
            seq.append(('m', f'buffer_load_dwordx4 v{vWd[n]}, s[{sW}:{sW + 3}], s{sKW} offen offset:{1024 * n}{ntw} lds', ('st', j)))
        for n in range(2):
            seq.append(('m', f'buffer_load_dwordx4 v{vL16}, s[{sO}:{sO + 3}], s{sKO} offen offset:{2048 + 1024 * n} lds', ('st', j)))
        return seq

    def dma_pre(j):
        return [('s', f's_add_u32 s{sKW}, s{sKW}, {32 * 1280}'), ('s', f's_add_u32 s{sKO}, s{sKO}, 2048')] + dma(j)

    for j in range(NS - 1):
        emit_seq(p, dma(j) if j == 0 else dma_pre(j))
    p(f"""
    v_and_b32 v7, 1, v4
    v_lshl_add_u32 v8, v7, 2, v5
    v_lshrrev_b32 v9, 1, v4
    v_lshlrev_b32 v10, 13, v9
    v_lshl_add_u32 v10, v8, 8, v10
    v_lshl_add_u32 v10, v6, 3, v10
    s_and_b32 s6, s{sWave}, 1
    s_lshl_b32 s6, s6, 2
    s_lshr_b32 s7, s{sWave}, 1
    """)
    for t in range(4):
        p(f"""
        s_add_u32 s24, s6, {t}
        v_xor_b32 v11, s24, v8
        v_lshl_add_u32 v{vA[0][t]}, v11, 5, v10
        v_add_u32 v{vA[1][t]}, 65536, v{vA[0][t]}
        """)
    p(f"""
    s_lshl_b32 s24, s7, 13
    s_add_u32 s24, s24, 2048
    v_lshlrev_b32 v11, 10, v9
    v_lshl_add_u32 v11, v7, 9, v11
    v_lshl_add_u32 v11, v3, 4, v11
    v_add_u32 v{vB[0]}, s24, v11
    v_add_u32 v{vB[1]}, 65536, v{vB[0]}
    v_lshlrev_b32 v11, 1, v7
    v_add_u32 v11, v11, v9
    v_lshlrev_b32 v11, 8, v11
    v_lshl_add_u32 v{vSt}, v3, 4, v11
    s_lshl_b32 s24, s3, 3
    s_lshl_b32 s25, s7, 2
    s_add_u32 s24, s24, s25
    s_mul_i32 s24, s24, 20480
    s_mul_i32 s25, s5, 2621440
    s_add_u32 s24, s24, s25
    s_lshl_b32 s25, s4, 12
    s_add_u32 s24, s24, s25
    s_lshl_b32 s25, s6, 9
    s_add_u32 s24, s24, s25
    s_add_u32 s24, s24, {WS_PART}
    """)
    srd_off(p, sP, 46, 's24', 3 * 20480 + 2048)
    for r in range(64):
        p(f'v_mov_b32 v{r}, 0')

    A = lambda b, t: 64 + 32 * b + 4 * t
    B = lambda b, q: 80 + 32 * b + 4 * q

    def mfmas(s):
        b = s % 2
        return [f'{MF} v[{16 * t + 4 * q}:{16 * t + 4 * q + 3}], v[{A(b, t)}:{A(b, t) + 3}], v[{B(b, q)}:{B(b, q) + 3}], v[{16 * t + 4 * q}:{16 * t + 4 * q + 3}]'
                for t in range(4) for q in range(4)]

    def reads(s):
        b = s % 2
        so = (s % NS) * SLOT
        wd, so = so // 65536, so % 65536
        ra = lambda t: [f'ds_read_b64_tr_b16 v[{A(b, t) + 2 * x}:{A(b, t) + 2 * x + 1}], v{vA[wd][t]} offset:{so + 4096 * x}' for x in range(2)]
        rb = lambda q: [f'ds_read_b128 v[{B(b, q)}:{B(b, q) + 3}], v{vB[wd]} offset:{so + (q >> 1) * 4096 + (q & 1) * 256}']
        return ra(0) + rb(0) + rb(1) + rb(2) + rb(3) + ra(1) + ra(2) + ra(3)

    pipeline(p, 64, NS, mfmas, reads, dma_pre, [(0, 8), (8, 16)], 0, 12, body=8, label='L_p4_loop', cnt=sCnt, prof=prof)
    if prof:
        p.add(prof_stamp(1))
        p.add(prof_stamp(2))
    p('s_waitcnt lgkmcnt(0)')
    for q in range(4):
        p(f's_mov_b32 s24, {q * 20480}')
        for t in range(2):
            d = 64 + 8 * q + 4 * t
            for h in range(2):
                a = 16 * (2 * t + h) + 4 * q
                p(f'v_cvt_pk_bf16_f32 v{d + 2 * h}, v{a}, v{a + 1}')
                p(f'v_cvt_pk_bf16_f32 v{d + 2 * h + 1}, v{a + 2}, v{a + 3}')
        for t in range(2):
            d = 64 + 8 * q + 4 * t
            p(f'v_permlane16_swap_b32 v{d}, v{d + 2}')
            p(f'v_permlane16_swap_b32 v{d + 1}, v{d + 3}')
        for t in range(2):
            d = 64 + 8 * q + 4 * t
            p(f'buffer_store_dwordx4 v[{d}:{d + 3}], v{vSt}, s[{sP}:{sP + 3}], s24 offen offset:{1024 * t}{st_flag}')
    p('s_waitcnt vmcnt(8)')
    if prof:
        prof_end(p, 46, 0x8100000)
    p('L_p4_end:')
    p('s_endpgm')
    st = p.resolve_waits()
    nn = p.fix_hazards()
    fold_loop(p, 'L_p4_loop')
    print('p4 waits', st, 'nops', nn)
    return kernel_text('p4_kernel', p, 144, 0, 96), ('p4_kernel', 240, 256, NS * SLOT)


def gen_p6(prof=False, st_flag=' sc1', ntw='', NS=8):
    p = Prog()
    SLOT = 20480
    sW, sH, sA = 8, 12, 16
    sM0, sM1, sKW, sKH = 20, 21, 22, 23
    NW = 3
    vA = [[176 + 2 * wdw + e for e in range(2)] for wdw in range(NW)]
    vB = [182, 183, 184]
    vWd = [185, 186, 187]
    vHd = [188, 189]
    vSt = 190
    p(f"""
    s_cmp_ge_u32 s2, 256
    s_cbranch_scc1 L_p6_end
    s_load_dwordx4 s[40:43], s[0:1], 48
    s_load_dwordx2 s[46:47], s[0:1], 104
    """)
    if prof:
        prof_begin(p)
    lane_setup(p)
    p(f"""
    s_and_b32 s3, s2, 1
    s_lshl_b32 s3, s3, 3
    s_lshr_b32 s5, s2, 3
    s_and_b32 s6, s5, 7
    s_add_u32 s3, s3, s6
    s_and_b32 s4, s2, 6
    s_lshl_b32 s4, s4, 1
    s_lshr_b32 s5, s5, 3
    s_add_u32 s4, s4, s5
    v_and_b32 v7, 1, v1
    v_mul_u32_u24 v7, 192, v7
    v_add_u32 v7, v7, v2
    """)
    for n in range(3):
        p(f"""
        v_add_u32 v8, {64 * n}, v7
        v_mul_u32_u24 v9, 5462, v8
        v_lshrrev_b32 v9, 16, v9
        v_mul_u32_u24 v10, 12, v9
        v_sub_u32 v10, v8, v10
        v_lshrrev_b32 v11, 2, v9
        v_and_b32 v11, 2, v11
        v_xor_b32 v10, v10, v11
        v_mul_u32_u24 v9, 3072, v9
        v_lshl_add_u32 v9, v10, 4, v9
        v_subrev_u32 v{vWd[n]}, {1024 * n}, v9
        """)
    p(f"""
    v_lshlrev_b32 v{vHd[0]}, 4, v2
    v_add_u32 v{vHd[1]}, {20480 - 1024}, v{vHd[0]}
    s_mul_i32 s6, s4, 192
    s_sub_u32 s7, {640 * 3072}, s6
    s_lshl_b32 s24, s3, 3
    s_lshl_b32 s25, s{sWave}, 1
    s_add_u32 s24, s24, s25
    s_mul_i32 s24, s24, 20480
    s_add_u32 s24, s24, {WS_H2}
    s_mul_i32 s{sM0}, s{sWave}, 3072
    s_lshl_b32 s{sM1}, s{sWave}, 11
    s_add_u32 s{sM1}, s{sM1}, 12288
    s_cmp_ge_u32 s{sWave}, 2
    s_waitcnt lgkmcnt(0)
    s_cselect_b32 s40, s42, s40
    s_cselect_b32 s41, s43, s41
    """)
    srd_off(p, sW, 40, 's6', 's7')
    srd_off(p, sH, 46, 's24', 40960)

    def dma(j):
        if j >= 20:
            return []
        seq = [('s', f's_add_u32 m0, s{sM0}, {(j % NS) * SLOT}'), ('s', f's_mov_b32 s{sKW}, {j * 32 * 3072}'), ('s', f's_mov_b32 s{sKH}, {j * 1024}')]
        for n in range(3):
            seq.append(('m', f'buffer_load_dwordx4 v{vWd[n]}, s[{sW}:{sW + 3}], s{sKW} offen offset:{1024 * n}{ntw} lds', ('st', j)))
        seq.append(('s', f's_add_u32 m0, s{sM1}, {(j % NS) * SLOT}'))
        for n in range(2):
            seq.append(('m', f'buffer_load_dwordx4 v{vHd[n]}, s[{sH}:{sH + 3}], s{sKH} offen offset:{1024 * n} lds', ('st', j)))
        return seq

    for j in range(NS - 1):
        emit_seq(p, dma(j))
    p(f"""
    v_lshl_add_u32 v7, v4, 3, v5
    v_mul_u32_u24 v7, 192, v7
    v_lshl_add_u32 v7, v6, 3, v7
    v_and_b32 v8, 1, v4
    s_and_b32 s6, s{sWave}, 1
    s_lshr_b32 s7, s{sWave}, 1
    s_mul_i32 s24, s6, 3
    v_xor_b32 v9, s24, v8
    v_lshl_add_u32 v{vA[0][0]}, v9, 5, v7
    s_add_u32 s24, s24, 1
    v_xor_b32 v9, s24, v8
    v_lshl_add_u32 v{vA[0][1]}, v9, 5, v7
    s_lshl_b32 s24, s7, 12
    s_add_u32 s24, s24, 12288
    v_add_u32 v{vB[0]}, s24, v{vHd[0]}
    """)
    for wdw in range(1, NW):
        for e in range(2):
            p(f'v_add_u32 v{vA[wdw][e]}, {wdw * 3 * SLOT}, v{vA[0][e]}')
        p(f'v_add_u32 v{vB[wdw]}, {wdw * 3 * SLOT}, v{vB[0]}')
    p(f"""
    v_lshrrev_b32 v9, 1, v4
    v_lshlrev_b32 v9, 8, v9
    v_lshl_add_u32 v9, v3, 4, v9
    v_mul_u32_u24 v8, 49152, v8
    v_add_u32 v{vSt}, v8, v9
    s_lshl_b32 s24, s3, 3
    s_lshl_b32 s25, s7, 2
    s_add_u32 s24, s24, s25
    s_mul_i32 s24, s24, 49152
    s_mul_i32 s25, s4, 3072
    s_add_u32 s24, s24, s25
    s_mul_i32 s25, s6, 1536
    s_add_u32 s24, s24, s25
    s_add_u32 s24, s24, {WS_ACT}
    """)
    srd_off(p, sA, 46, 's24', 3 * 49152 + 1536)

    A = lambda b, t: 96 + 40 * b + 4 * t
    B = lambda b, q: 120 + 40 * b + 4 * q
    def mfmas(s):
        b = s % 2
        out = []
        for t in range(6):
            for q in range(4):
                d = 16 * t + 4 * q
                out.append(f"{MF} v[{d}:{d + 3}], v[{A(b, t)}:{A(b, t) + 3}], v[{B(b, q)}:{B(b, q) + 3}], {'0' if s == 0 else f'v[{d}:{d + 3}]'}")
        return out

    def reads(s):
        b = s % 2
        sl = s % NS
        wd, so = sl // 3, (sl % 3) * SLOT
        ra = lambda t: [f'ds_read_b64_tr_b16 v[{A(b, t) + 2 * x}:{A(b, t) + 2 * x + 1}], v{vA[wd][(t // 2) % 2]} offset:{so + (t % 2) * 6144 + (t // 4) * 64 + 768 * x}' for x in range(2)]
        rb = lambda q: [f'ds_read_b128 v[{B(b, q)}:{B(b, q) + 3}], v{vB[wd]} offset:{so + q * 1024}']
        return ra(0) + rb(0) + rb(1) + rb(2) + rb(3) + ra(1) + ra(2) + ra(3) + ra(4) + ra(5)

    pipeline(p, 20, NS, mfmas, reads, dma, [(0, 8), (8, 24)], 0, 16, prof=prof)
    if prof:
        p.add(prof_stamp(1))
    c1 = -2 * math.log2(math.e) * math.sqrt(2 / math.pi)
    c2 = c1 * 0.044715
    p(f'v_mov_b32 v96, {f2h(c1)}')
    p(f's_mov_b32 s24, {f2h(c2)}')
    p(f's_mov_b32 s25, {2 * 49152}')
    T = 100
    for i in range(3):
        for pr in range(2):
            regs = [(32 * i + 8 * pr + k, 32 * i + 16 + 8 * pr + k) for k in range(8)]
            for k, (x, u) in enumerate(regs):
                p(f'v_mul_f32 v{T + k}, v{x}, v{x}')
            for k, (x, u) in enumerate(regs):
                p(f'v_fma_f32 v{T + k}, v{T + k}, s24, v96')
            for k, (x, u) in enumerate(regs):
                p(f'v_mul_f32 v{T + k}, v{T + k}, v{x}')
            for k, (x, u) in enumerate(regs):
                p(f'v_exp_f32 v{T + k}, v{T + k}')
                p(f'v_mul_f32 v{x}, v{x}, v{u}')
            for k, (x, u) in enumerate(regs):
                p(f'v_add_f32 v{T + k}, 1.0, v{T + k}')
            for k, (x, u) in enumerate(regs):
                p(f'v_rcp_f32 v{T + k}, v{T + k}')
            for k, (x, u) in enumerate(regs):
                p(f'v_mul_f32 v{x}, v{x}, v{T + k}')
            d = 112 + 4 * (2 * i + pr)
            x0 = regs[0][0]
            for k in range(4):
                p(f'v_cvt_pk_bf16_f32 v{d + k}, v{x0 + 2 * k}, v{x0 + 2 * k + 1}')
            p(f'v_permlane16_swap_b32 v{d}, v{d + 2}')
            p(f'v_permlane16_swap_b32 v{d + 1}, v{d + 3}')
            p(f"buffer_store_dwordx4 v[{d}:{d + 3}], v{vSt}, s[{sA}:{sA + 3}], {'s25' if pr else '0'} offen offset:{512 * i}{st_flag}")
    if prof:
        p.add(prof_stamp(2))
        prof_end(p, 46, 0x8200000)
    p('L_p6_end:')
    p('s_endpgm')
    st = p.resolve_waits()
    nn = p.fix_hazards()
    print('p6 waits', st, 'nops', nn)
    return kernel_text('p6_kernel', p, 192, 0, 96), ('p6_kernel', 256, 256, NS * SLOT)


def gen_p7(prof=False, st_flag='', ntw='', NS=8):
    p = Prog()
    SLOT = 20480
    sW, sA, sX, sG, sOut = 8, 12, 16, 24, 28
    sM0, sM1, sKW, sKA = 20, 21, 22, 23
    NW = 3
    vA = [[112 + 2 * wdw + e for e in range(2)] for wdw in range(NW)]
    vB = [118, 119, 120]
    vWd = [121, 122]
    vAd = [123, 124, 125]
    vSt = 126
    vX = 128
    vG = 140
    p(f"""
    s_cmp_ge_u32 s2, 224
    s_cbranch_scc1 L_p7_end
    s_load_dwordx2 s[40:41], s[0:1], 64
    s_load_dwordx2 s[44:45], s[0:1], 88
    s_load_dwordx2 s[46:47], s[0:1], 104
    """)
    if prof:
        prof_begin(p)
    lane_setup(p)
    p(f"""
    s_lshr_b32 s5, s2, 3
    s_lshr_b32 s3, s2, 1
    s_and_b32 s3, s3, 3
    s_mul_i32 s3, s3, 28
    s_add_u32 s5, s5, s3
    s_cmp_ge_u32 s5, 110
    s_cbranch_scc1 L_p7_end
    s_mul_i32 s3, s5, 205
    s_lshr_b32 s3, s3, 10
    s_mul_i32 s6, s3, 5
    s_sub_u32 s4, s5, s6
    s_and_b32 s6, s2, 1
    s_mul_i32 s6, s6, 5
    s_add_u32 s4, s4, s6
    """)
    for n in range(2):
        p(f"""
        v_lshrrev_b32 v7, 3, v2
        v_and_b32 v8, 2, v7
        v_or_b32 v8, {4 * n}, v8
        v_and_b32 v9, 7, v2
        v_xor_b32 v8, v8, v9
        v_lshl_add_u32 v7, v1, 4, v7
        v_add_u32 v7, {8 * n}, v7
        v_mul_u32_u24 v7, 1280, v7
        v_lshl_add_u32 v7, v8, 4, v7
        v_subrev_u32 v{vWd[n]}, {1024 * n}, v7
        """)
    p(f's_mul_i32 s6, s{sWave}, 3')
    for n in range(3):
        p(f"""
        s_add_u32 s7, s6, {n}
        s_lshr_b32 s32, s7, 1
        s_mul_i32 s32, s32, 49152
        s_and_b32 s7, s7, 1
        s_lshl_b32 s7, s7, 10
        s_add_u32 s32, s32, s7
        s_sub_u32 s32, s32, {1024 * n}
        v_lshl_add_u32 v{vAd[n]}, v2, 4, s32
        """)
    p(f"""
    s_lshl_b32 s6, s4, 7
    s_sub_u32 s7, {1536 * 1280}, s6
    s_mul_i32 s32, s3, {6 * 49152}
    s_sub_u32 s33, {128 * 49152}, s32
    s_add_u32 s32, s32, {WS_ACT}
    s_lshl_b32 s{sM0}, s{sWave}, 11
    s_mul_i32 s{sM1}, s{sWave}, 3072
    s_add_u32 s{sM1}, s{sM1}, 8192
    s_waitcnt lgkmcnt(0)
    """)
    srd_off(p, sW, 40, 's6', 's7')
    srd_off(p, sA, 46, 's32', 's33')

    def dma(j):
        if j >= 24:
            return []
        seq = [('s', f's_add_u32 m0, s{sM0}, {(j % NS) * SLOT}'), ('s', f's_mov_b32 s{sKW}, {j * 64 * 1280}'), ('s', f's_mov_b32 s{sKA}, {j * 2048}')]
        for n in range(2):
            seq.append(('m', f'buffer_load_dwordx4 v{vWd[n]}, s[{sW}:{sW + 3}], s{sKW} offen offset:{1024 * n}{ntw} lds', ('st', j)))
        seq.append(('s', f's_add_u32 m0, s{sM1}, {(j % NS) * SLOT}'))
        for n in range(3):
            seq.append(('m', f'buffer_load_dwordx4 v{vAd[n]}, s[{sA}:{sA + 3}], s{sKA} offen offset:{1024 * n} lds', ('st', j)))
        return seq

    for j in range(NS - 1):
        emit_seq(p, dma(j))
    p(f"""
    v_lshl_add_u32 v7, v4, 3, v5
    v_lshlrev_b32 v7, 7, v7
    v_lshl_add_u32 v7, v6, 3, v7
    v_and_b32 v8, 1, v4
    v_lshrrev_b32 v9, 1, v5
    v_lshl_add_u32 v9, v8, 1, v9
    s_and_b32 s6, s{sWave}, 1
    s_lshr_b32 s7, s{sWave}, 1
    s_lshl_b32 s32, s6, 1
    v_xor_b32 v10, s32, v9
    v_lshl_add_u32 v{vA[0][0]}, v10, 5, v7
    v_xor_b32 v10, 1, v10
    v_lshl_add_u32 v{vA[0][1]}, v10, 5, v7
    s_mul_i32 s32, s7, 6144
    s_add_u32 s32, s32, 8192
    v_lshl_add_u32 v{vB[0]}, v2, 4, s32
    """)
    for wdw in range(1, NW):
        for e in range(2):
            p(f'v_add_u32 v{vA[wdw][e]}, {wdw * 3 * SLOT}, v{vA[0][e]}')
        p(f'v_add_u32 v{vB[wdw]}, {wdw * 3 * SLOT}, v{vB[0]}')
    p(f"""
    v_lshrrev_b32 v9, 1, v4
    v_lshl_add_u32 v9, v8, 1, v9
    v_lshlrev_b32 v10, 8, v9
    v_lshl_add_u32 v10, v3, 4, v10
    v_lshlrev_b32 v11, 5, v9
    v_mul_u32_u24 v12, 1280, v3
    v_lshl_add_u32 v{vSt}, v9, 4, v12
    s_mul_i32 s32, s3, 6
    s_mul_i32 s33, s7, 3
    s_add_u32 s32, s32, s33
    s_mul_i32 s32, s32, 20480
    s_lshl_b32 s33, s4, 1
    s_add_u32 s33, s33, s6
    s_lshl_b32 s34, s33, 10
    s_add_u32 s34, s34, s32
    s_lshl_b32 s35, s33, 6
    s_add_u32 s35, s35, s32
    s_lshl_b32 s33, s33, 7
    s_add_u32 s33, s33, {5 * 2560}
    """)
    srd_off(p, sX, 46, WS_X1, 2621440)
    srd(p, sG, 46, 47, 15360)
    srd(p, sOut, 44, 45, 2621440)
    for q in range(3):
        p(f'buffer_load_dwordx4 v[{vX + 4 * q}:{vX + 4 * q + 3}], v10, s[{sX}:{sX + 3}], s34 offen')
        if q < 2:
            p(f's_add_u32 s34, s34, 20480')
    p(f'buffer_load_dwordx4 v[{vG}:{vG + 3}], v11, s[{sG}:{sG + 3}], s33 offen')
    p(f'buffer_load_dwordx4 v[{vG + 4}:{vG + 7}], v11, s[{sG}:{sG + 3}], s33 offen offset:16')

    A = lambda b, u, t: 24 + 40 * b + 20 * u + 4 * t
    B = lambda b, u, q: 32 + 40 * b + 20 * u + 4 * q

    def mfmas(s):
        b = s % 2
        out = []
        for u in range(2):
            for t in range(2):
                for q in range(3):
                    d = 8 * q + 4 * t
                    out.append(f"{MF} v[{d}:{d + 3}], v[{A(b, u, t)}:{A(b, u, t) + 3}], v[{B(b, u, q)}:{B(b, u, q) + 3}], {'0' if s == 0 and u == 0 else f'v[{d}:{d + 3}]'}")
        return out

    def reads(s):
        b = s % 2
        sl = s % NS
        wd, so = sl // 3, (sl % 3) * SLOT
        out = []
        for u in range(2):
            ra = lambda t: [f'ds_read_b64_tr_b16 v[{A(b, u, t) + 2 * x}:{A(b, u, t) + 2 * x + 1}], v{vA[wd][t]} offset:{so + 4096 * u + 512 * x}' for x in range(2)]
            rb = lambda q: [f'ds_read_b128 v[{B(b, u, q)}:{B(b, u, q) + 3}], v{vB[wd]} offset:{so + q * 2048 + u * 1024}']
            out += ra(0) + rb(0) + rb(1) + rb(2) + ra(1)
        return out

    pipeline(p, 24, NS, mfmas, reads, dma, [(0, 4), (4, 12)], 0, 7, prof=prof)
    if prof:
        p.add(prof_stamp(1))
    for q in range(3):
        for k in range(4):
            p(f'v_permlane16_swap_b32 v{8 * q + k}, v{8 * q + 4 + k}')
        for d in range(4):
            p(f'v_lshlrev_b32 v{24 + 2 * d}, 16, v{vX + 4 * q + d}')
            p(f'v_and_b32 v{25 + 2 * d}, 0xffff0000, v{vX + 4 * q + d}')
        for k in range(8):
            p(f'v_fmac_f32 v{24 + k}, v{vG + k}, v{8 * q + k}')
        for d in range(4):
            p(f'v_cvt_pk_bf16_f32 v{8 * q + d}, v{24 + 2 * d}, v{25 + 2 * d}')
        p(f'buffer_store_dwordx4 v[{8 * q}:{8 * q + 3}], v{vSt}, s[{sOut}:{sOut + 3}], s35 offen{st_flag}')
        if q < 2:
            p(f's_add_u32 s35, s35, 20480')
    if prof:
        p.add(prof_stamp(2))
        prof_end(p, 46, 0x8300000)
    p('L_p7_end:')
    p('s_endpgm')
    st = p.resolve_waits()
    nn = p.fix_hazards()
    print('p7 waits', st, 'nops', nn)
    return kernel_text('p7_kernel', p, 148, 0, 96), ('p7_kernel', 224, 256, NS * SLOT)
```

```python
from asmgen import *
from layout import *


def srd(p, s, base_lo, base_hi, size):
    if base_lo != s:
        p(f's_mov_b32 s{s}, s{base_lo}')
        p(f's_mov_b32 s{s + 1}, s{base_hi}')
    p(f's_mov_b32 s{s + 2}, {size}')
    p(f's_mov_b32 s{s + 3}, 0x20000')


def srd_off(p, s, ptr, off, size):
    p(f's_add_u32 s{s}, s{ptr}, {off}')
    p(f's_addc_u32 s{s + 1}, s{ptr + 1}, 0')
    p(f's_mov_b32 s{s + 2}, {size}')
    p(f's_mov_b32 s{s + 3}, 0x20000')


def gen_mod():
    p = Prog()
    p(f"""
    s_and_b32 s3, s2, 7
    s_lshr_b32 s20, s2, 5
    s_lshl_b32 s20, s20, 3
    s_add_u32 s20, s20, s3
    s_cmp_ge_u32 s20, 60
    s_cbranch_scc1 L_mod_end
    s_load_dwordx4 s[4:7], s[0:1], 72
    s_load_dwordx2 s[16:17], s[0:1], 104
    s_lshr_b32 s21, s2, 3
    s_and_b32 s21, s21, 3
    s_lshl_b32 s20, s20, 6
    s_lshl_b32 s21, s21, 4
    s_add_u32 s20, s20, s21
    s_lshl_b32 s22, s20, 1
    v_lshrrev_b32 v1, 1, v0
    v_and_b32 v2, 1, v0
    v_mul_u32_u24 v3, 7680, v1
    v_lshl_add_u32 v3, v2, 4, v3
    v_lshlrev_b32 v4, 1, v1
    s_waitcnt lgkmcnt(0)
    """)
    srd(p, 8, 4, 5, 1280)
    srd(p, 12, 6, 7, 640 * 7680)
    srd(p, 16, 16, 17, 15360)
    for it in range(5):
        p(f's_add_u32 s23, s22, {it * 128 * 7680}')
        p(f'buffer_load_dwordx4 v[{16 + 4 * it}:{19 + 4 * it}], v3, s[12:15], s23 offen nt')
    for it in range(5):
        p(f'buffer_load_ushort v{8 + it}, v4, s[8:11], 0 offen offset:{256 * it}')
    for it in range(5):
        p(f'v_lshlrev_b32 v{8 + it}, 16, v{8 + it}')
        p(f'v_mul_f32 v{36 + it}, 0xbfb8aa3b, v{8 + it}')
    for it in range(5):
        p(f'v_exp_f32 v{36 + it}, v{36 + it}')
    for it in range(5):
        p(f'v_add_f32 v{36 + it}, 1.0, v{36 + it}')
    for it in range(5):
        p(f'v_rcp_f32 v{36 + it}, v{36 + it}')
    for it in range(5):
        p(f'v_mul_f32 v{8 + it}, v{8 + it}, v{36 + it}')
    for it in range(5):
        for d in range(4):
            p(f'v_lshlrev_b32 v52, 16, v{16 + 4 * it + d}')
            p(f'v_and_b32 v53, 0xffff0000, v{16 + 4 * it + d}')
            if it == 0:
                p(f'v_mul_f32 v{44 + 2 * d}, v52, v{8 + it}')
                p(f'v_mul_f32 v{45 + 2 * d}, v53, v{8 + it}')
            else:
                p(f'v_fmac_f32 v{44 + 2 * d}, v52, v{8 + it}')
                p(f'v_fmac_f32 v{45 + 2 * d}, v53, v{8 + it}')
    for rot in (2, 4, 8):
        for e in range(8):
            p(f'v_add_f32_dpp v{44 + e}, v{44 + e}, v{44 + e} row_ror:{rot} row_mask:0xf bank_mask:0xf')
    p("""
    v_lshrrev_b32 v5, 4, v0
    v_lshlrev_b32 v5, 6, v5
    v_lshl_add_u32 v5, v2, 5, v5
    v_and_b32 v6, 15, v0
    v_cmp_gt_u32 vcc, 2, v6
    s_and_saveexec_b64 s[24:25], vcc
    ds_write_b128 v5, v[44:47]
    ds_write_b128 v5, v[48:51] offset:16
    s_mov_b64 exec, s[24:25]
    s_waitcnt lgkmcnt(0)
    s_barrier
    v_cmp_gt_u32 vcc, 16, v0
    s_and_saveexec_b64 s[24:25], vcc
    s_cbranch_execz L_mod_end
    v_lshlrev_b32 v5, 2, v0
    """)
    for i in range(16):
        p(f'ds_read_b32 v{16 + i}, v5 offset:{64 * i}')
    for st in (8, 4, 2, 1):
        for i in range(st):
            p(f'v_add_f32 v{16 + i}, v{16 + i}, v{16 + i + st}')
    p("""
    s_lshl_b32 s22, s20, 2
    buffer_store_dword v16, v5, s[16:19], s22 offen
    L_mod_end:
    s_endpgm
    """)
    p.resolve_waits()
    p.fix_hazards()
    return kernel_text('mod_kernel', p, 56, 0, 32), ('mod_kernel', 256, 256, 1024)


def row_reduce(p, v, t, vaddr_w, vaddr_r, off, r0):
    p(f"""
    v_add_f32_dpp v{v}, v{v}, v{v} row_ror:8 row_mask:0xf bank_mask:0xf
    v_mov_b32 v{t}, v{v}
    v_permlane16_swap_b32 v{v}, v{t}
    v_add_f32 v{v}, v{v}, v{t}
    v_mov_b32 v{t}, v{v}
    v_permlane32_swap_b32 v{v}, v{t}
    v_add_f32 v{v}, v{v}, v{t}
    ds_write_b32 v{vaddr_w}, v{v} offset:{off}
    s_waitcnt lgkmcnt(0)
    s_barrier
    ds_read_b128 v[{r0}:{r0 + 3}], v{vaddr_r} offset:{off}
    ds_read_b128 v[{r0 + 4}:{r0 + 7}], v{vaddr_r} offset:{off + 16}
    ds_read_b64 v[{r0 + 8}:{r0 + 9}], v{vaddr_r} offset:{off + 32}
    """)
    for i in range(5):
        p(f'v_add_f32 v{r0 + i}, v{r0 + i}, v{r0 + 5 + i}')
    p(f"""
    v_add_f32 v{r0}, v{r0}, v{r0 + 1}
    v_add_f32 v{r0 + 2}, v{r0 + 2}, v{r0 + 3}
    v_add_f32 v{r0}, v{r0}, v{r0 + 4}
    v_add_f32 v{v}, v{r0}, v{r0 + 2}
    """)


def ln_core(p, X, G, B, scale):
    p(f"""
    v_add_f32 v56, v{X}, v{X + 1}
    v_add_f32 v57, v{X + 2}, v{X + 3}
    v_add_f32 v58, v{X + 4}, v{X + 5}
    v_add_f32 v59, v{X + 6}, v{X + 7}
    v_add_f32 v56, v56, v57
    v_add_f32 v58, v58, v59
    v_add_f32 v56, v56, v58
    """)
    row_reduce(p, 56, 57, 6, 7, 0, 60)
    p(f'v_mul_f32 v56, {f2h(-1.0 / 640)}, v56')
    for e in range(8):
        p(f'v_add_f32 v{X + e}, v{X + e}, v56')
    p(f'v_mul_f32 v56, v{X}, v{X}')
    p(f'v_mul_f32 v57, v{X + 1}, v{X + 1}')
    for e in range(2, 8):
        p(f'v_fmac_f32 v{56 + e % 2}, v{X + e}, v{X + e}')
    p('v_add_f32 v56, v56, v57')
    row_reduce(p, 56, 57, 6, 7, 512, 60)
    p(f'v_mov_b32 v57, {f2h(1e-5)}')
    p(f'v_fmac_f32 v57, {f2h(1.0 / 640)}, v56')
    p('v_rsq_f32 v57, v57')
    if scale != 1.0:
        for e in range(8):
            p(f'v_mul_f32 v{B + e}, {f2h(scale)}, v{B + e}')
        p(f'v_mul_f32 v57, {f2h(scale)}, v57')
    for e in range(8):
        p(f'v_add_f32 v{G + e}, 1.0, v{G + e}')
    for e in range(8):
        p(f'v_mul_f32 v{X + e}, v{X + e}, v57')
    for e in range(8):
        p(f'v_fmac_f32 v{B + e}, v{X + e}, v{G + e}')
    for d in range(4):
        p(f'v_cvt_pk_bf16_f32 v{X + d}, v{B + 2 * d}, v{B + 2 * d + 1}')


def ln_common(p, f16=False):
    sh = 1 if f16 else 2
    p(f"""
    v_and_b32 v1, 7, v0
    v_lshrrev_b32 v2, 3, v0
    s_and_b32 s20, s2, {(1 << sh) - 1}
    s_lshl_b32 s20, s20, 7
    v_lshlrev_b32 v5, {7 + sh}, v2
    v_lshl_add_u32 v5, v1, 4, v5
    v_add_u32 v5, s20, v5
    s_lshr_b32 s21, s2, {sh}
    s_mul_i32 s21, s21, {10240 << sh}
    v_lshrrev_b32 v8, 6, v0
    v_lshlrev_b32 v7, 6, v1
    v_lshl_add_u32 v6, v8, 2, v7
    s_mul_i32 s22, s2, 10240
    """)


def gen_ln1():
    p = Prog()
    p("""
    s_cmp_ge_u32 s2, 256
    s_cbranch_scc1 L_ln1_end
    s_load_dwordx2 s[4:5], s[0:1], 0
    s_load_dwordx2 s[6:7], s[0:1], 104
    """)
    ln_common(p)
    p("""
    v_mul_u32_u24 v3, 1280, v1
    v_lshl_add_u32 v3, v2, 4, v3
    v_lshlrev_b32 v4, 5, v2
    s_waitcnt lgkmcnt(0)
    """)
    srd(p, 8, 4, 5, 2621440)
    srd(p, 12, 6, 7, 15360)
    srd_off(p, 16, 6, WS_H, 2621440)
    p("""
    buffer_load_dwordx4 v[12:15], v3, s[8:11], s22 offen nt
    buffer_load_dwordx4 v[24:27], v4, s[12:15], 0 offen
    buffer_load_dwordx4 v[28:31], v4, s[12:15], 0 offen offset:16
    buffer_load_dwordx4 v[32:35], v4, s[12:15], 0 offen offset:2560
    buffer_load_dwordx4 v[36:39], v4, s[12:15], 0 offen offset:2576
    """)
    for d in range(4):
        p(f'v_lshlrev_b32 v{16 + 2 * d}, 16, v{12 + d}')
        p(f'v_and_b32 v{17 + 2 * d}, 0xffff0000, v{12 + d}')
    ln_core(p, 16, 32, 24, QSCALE)
    p("""
    buffer_store_dwordx4 v[16:19], v5, s[16:19], s21 offen
    L_ln1_end:
    s_endpgm
    """)
    p.resolve_waits()
    p.fix_hazards()
    return kernel_text('ln1_kernel', p, 72, 0, 32), ('ln1_kernel', 256, 640, 1024)


def gen_ln2():
    p = Prog()
    p("""
    s_cmp_ge_u32 s2, 256
    s_cbranch_scc1 L_ln2_end
    s_load_dwordx2 s[4:5], s[0:1], 0
    s_load_dwordx2 s[6:7], s[0:1], 104
    """)
    ln_common(p, True)
    p("""
    v_mul_u32_u24 v3, 1280, v1
    v_lshl_add_u32 v3, v2, 4, v3
    v_lshlrev_b32 v4, 5, v2
    s_waitcnt lgkmcnt(0)
    """)
    srd(p, 8, 4, 5, 2621440)
    srd(p, 12, 6, 7, 15360)
    srd_off(p, 16, 6, WS_PART, NSPLIT * 2621440)
    srd_off(p, 24, 6, WS_H2, 2621440)
    srd_off(p, 28, 6, WS_X1, 2621440)
    for s in range(NSPLIT):
        p(f's_add_u32 s23, s21, {s * 2621440}')
        p(f'buffer_load_dwordx4 v[{72 + 4 * s}:{75 + 4 * s}], v5, s[16:19], s23 offen')
    p(f"""
    buffer_load_dwordx4 v[12:15], v3, s[8:11], s22 offen
    s_mov_b32 s23, {2 * 2560}
    buffer_load_dwordx4 v[40:43], v4, s[12:15], s23 offen
    buffer_load_dwordx4 v[44:47], v4, s[12:15], s23 offen offset:16
    buffer_load_dwordx4 v[24:27], v4, s[12:15], s23 offen offset:2560
    buffer_load_dwordx4 v[28:31], v4, s[12:15], s23 offen offset:2576
    s_mov_b32 s23, {4 * 2560}
    buffer_load_dwordx4 v[32:35], v4, s[12:15], s23 offen
    buffer_load_dwordx4 v[36:39], v4, s[12:15], s23 offen offset:16
    """)
    for s in range(NSPLIT):
        for d in range(4):
            if s == 0:
                p(f'v_lshlrev_b32 v{48 + 2 * d}, 16, v{72 + d}')
                p(f'v_and_b32 v{49 + 2 * d}, 0xffff0000, v{72 + d}')
            else:
                p(f'v_lshlrev_b32 v56, 16, v{72 + 4 * s + d}')
                p(f'v_and_b32 v57, 0xffff0000, v{72 + 4 * s + d}')
                p(f'v_add_f32 v{48 + 2 * d}, v{48 + 2 * d}, v56')
                p(f'v_add_f32 v{49 + 2 * d}, v{49 + 2 * d}, v57')
    for d in range(4):
        p(f'v_lshlrev_b32 v{16 + 2 * d}, 16, v{12 + d}')
        p(f'v_and_b32 v{17 + 2 * d}, 0xffff0000, v{12 + d}')
    for e in range(8):
        p(f'v_fmac_f32 v{16 + e}, v{40 + e}, v{48 + e}')
    for d in range(4):
        p(f'v_cvt_pk_bf16_f32 v{12 + d}, v{16 + 2 * d}, v{17 + 2 * d}')
    p('buffer_store_dwordx4 v[12:15], v5, s[28:31], s21 offen')
    ln_core(p, 16, 32, 24, 1.0)
    p("""
    buffer_store_dwordx4 v[16:19], v5, s[24:27], s21 offen
    L_ln2_end:
    s_endpgm
    """)
    p.resolve_waits()
    p.fix_hazards()
    return kernel_text('ln2_kernel', p, 72 + 4 * NSPLIT, 0, 40), ('ln2_kernel', 256, 640, 1024)
```

```python
import struct, math
WS_MOD = 0
WS_H = 0x10000
WS_O = 0x400000
WS_PART = 0x2000000
WS_H2 = 0x3000000
WS_X1 = 0x3400000
WS_ACT = 0x3800000
NSPLIT = 3
QSCALE = math.log2(math.e) * 192 ** -0.5
def f2h(x):
    return '0x%08x' % struct.unpack('<I', struct.pack('<f', x))[0]
```

```python
import sys
from k_small import *
from k_att import gen_att
from k_gemm import gen_p4, gen_p6, gen_p7
HEAD = open('adaLN_cond__sliding_block_cached__geglu_ffn__prompt.s.ref').read().split('; Override launch')[0]
def build(kernels, path):
    out = HEAD
    for (_, _), (name, grid, block, lds) in kernels:
        out += f'; @launch kernel={name} grid=({grid},1,1) block=({block},1,1) lds={lds}\n'
    out += '.amdgcn_target "amdgcn-amd-amdhsa--gfx950"\n'
    for (code, _), _ in kernels:
        out += code
    for (_, desc), _ in kernels:
        out += desc
    open(path, 'w').write(out)
    print('wrote', path, len(out), 'bytes')
if __name__ == '__main__':
    prof = 'prof' in sys.argv
    kw = {}
    for a in sys.argv[2:]:
        if '=' in a:
            k, v = a.split('=', 1)
            kn, pn = k.split('.')
            try:
                v = eval(v)
            except Exception:
                pass
            kw.setdefault(kn, {})[pn] = v
    g = lambda n: kw.get(n, {})
    ks = [gen_mod(), gen_ln1(), gen_att(prof=prof, **g('att')), gen_p4(prof=prof, **g('p4')), gen_ln2(), gen_p6(prof=prof, **g('p6')), gen_p7(prof=prof, **g('p7'))]
    build(ks, sys.argv[1])
```

```python
from asmgen import *
from layout import *
from k_small import srd, srd_off

L = 4
RING0 = 65536
SLOT = 12288
VOTE = 131072
MOFF = 40.0
LMAX = 2.0 ** 70

vWe, vWo = 224, 225
vK = [226, 227, 228, 229]
vV = 230
vWd = [231, 232, 233]
vKd = [234, 235, 236]
vVd = 237
vL16 = 238
vl = [[239, 240], [241, 242]]
vm = [243, 244]
vt = 245
vri = [246, 247]
vt2 = 248
SB = [128, 160]
CB = 192
QA = 128
AR = 224
sW, sK, sV, sH, sO = 8, 12, 16, 20, 24
sWv3072, sWv1024, sOff, sH0, sH1, sO0, sO1, sRedo, sWave = 28, 29, 30, 31, 32, 33, 34, 35, 36


def slot_of(j):
    return (j + 4) % 8


def acc(t, g):
    return (SB[t] if t < 2 else (t - 2) * 32) + 16 * g


def softmax_items(b, i, raw):
    E, A = [], []
    for g in range(2):
        for p in range(8):
            r0 = b + 16 * g + 2 * p
            for r in (r0, r0 + 1):
                E.append(([f'v_add_f32 v{r}, v{vm[g]}, v{r}'] if raw else []) + [f'v_exp_f32 v{r}, v{r}'])
            ne = len(E)
            A.append((ne - 1, f'v_add_f32 v{vl[g][0]}, v{vl[g][0]}, v{r0}'))
            A.append((ne, f'v_add_f32 v{vl[g][1]}, v{vl[g][1]}, v{r0 + 1}'))
            u = 2 * i + p // 4
            if g == 0:
                A.append((ne, f'v_cvt_pk_bf16_f32 v{4 * u + p % 4}, v{r0}, v{r0 + 1}'))
            else:
                d = b + 16 + 8 * (p // 4) + p % 4
                A.append((ne, f'v_cvt_pk_bf16_f32 v{d}, v{r0}, v{r0 + 1}'))
                A.append((ne, f'v_accvgpr_write_b32 a{4 * u + p % 4}, v{d}'))
    return E, A


def place_softmax(w, g0, g1, E, A, cap=6):
    ne = 0
    last_was_exp = False
    ei = ai = 0
    for g in range(g0, g1 + 1):
        last = g == g1
        last_was_exp = False
        while ei < len(E) or ai < len(A):
            c = cap - w.load(g)
            a_ready = ai < len(A) and (A[ai][0] < ne or (A[ai][0] == ne and not last_was_exp))
            ecost = (len(E[ei]) + 1) if ei < len(E) else 99
            backlog = sum(1 for k in range(ai, len(A)) if A[k][0] <= ne)
            pick = None
            if a_ready and c >= 1 and (backlog >= 4 or c < ecost or (c % 2 == 1 and ecost == 2)):
                pick = 'a'
            elif ei < len(E) and c >= ecost:
                pick = 'e'
            elif a_ready and c >= 1:
                pick = 'a'
            elif last:
                pick = 'a' if (a_ready or ei >= len(E)) else 'e'
            if pick is None:
                break
            if pick == 'a':
                w.valu[g].append(Ins(A[ai][1]))
                ai += 1
                last_was_exp = False
            else:
                for x in E[ei]:
                    w.valu[g].append(Ins(x))
                ei += 1
                ne += 1
                last_was_exp = True
        if ei >= len(E) and ai >= len(A):
            return g
    return g1


def gen_att(prof=False, nt_w=' nt', nt_k=' nt', nt_v=(' nt', '', ''), st_flag=' sc1', PRO=3, pf_tail=(29, 30, 31, 32, 33, 34, 35), pf_v=(27, 28)):
    p = Prog()
    p(f"""
    s_cmp_ge_u32 s2, 256
    s_cbranch_scc1 L_att_end
    s_load_dwordx4 s[40:43], s[0:1], 8
    s_load_dwordx2 s[44:45], s[0:1], 24
    s_load_dwordx2 s[46:47], s[0:1], 104
    """)
    if pf_tail:
        p('s_load_dwordx2 s[76:77], s[0:1], 32')
        p('s_load_dwordx4 s[84:87], s[0:1], 48')
        p('s_load_dwordx2 s[88:89], s[0:1], 64')
    if prof:
        p('s_memtime s[60:61]')
        p('s_memrealtime s[72:73]')
    p(f"""
    v_lshrrev_b32 v1, 6, v0
    v_and_b32 v2, 63, v0
    v_readfirstlane_b32 s{sWave}, v1
    s_and_b32 s3, s2, 7
    s_lshl_b32 s3, s3, 2
    s_lshr_b32 s4, s2, 3
    s_and_b32 s4, s4, 3
    s_add_u32 s3, s3, s4
    s_lshr_b32 s4, s2, 5
    v_lshlrev_b32 v{vL16}, 4, v2
    s_mul_i32 s{sWv3072}, s{sWave}, 3072
    s_lshl_b32 s{sWv1024}, s{sWave}, 10
    s_lshl_b32 s5, s4, 3
    s_lshl_b32 s6, s{sWave}, 1
    s_add_u32 s5, s5, s6
    s_mov_b32 s{sRedo}, 0
    """)
    p(f'v_mul_u32_u24 v3, 192, v1')
    p(f'v_add_u32 v3, v3, v2')
    for n in range(3):
        p(f"""
        v_add_u32 v4, {64 * n}, v3
        v_mul_u32_u24 v5, 2731, v4
        v_lshrrev_b32 v5, 16, v5
        v_mul_u32_u24 v6, 24, v5
        v_sub_u32 v6, v4, v6
        v_lshrrev_b32 v7, 1, v5
        v_and_b32 v8, 1, v7
        v_lshlrev_b32 v8, 2, v8
        v_xor_b32 v8, v8, v6
        v_mul_u32_u24 v9, 12288, v5
        v_lshl_add_u32 v9, v8, 4, v9
        v_subrev_u32 v{vWd[n]}, {1024 * n}, v9
        v_and_b32 v8, 7, v7
        v_xor_b32 v8, v8, v6
        v_mul_u32_u24 v9, 384, v5
        v_lshl_add_u32 v9, v8, 4, v9
        v_subrev_u32 v{vKd[n]}, {1024 * n}, v9
        """)
    p('s_waitcnt lgkmcnt(0)')
    p(f's_mul_i32 s6, s3, 384')
    p(f's_sub_u32 s7, {640 * 12288}, s6')
    p(f's_add_u32 s{sW}, s44, s6\ns_addc_u32 s{sW + 1}, s45, 0\ns_mov_b32 s{sW + 2}, s7\ns_mov_b32 s{sW + 3}, 0x20000')
    p(f's_mul_i32 s6, s5, 40960')
    p(f's_add_u32 s6, s6, {WS_H}')
    srd_off(p, sH, 46, 's6', 81920)

    def ring_dma(j):
        seq = [('s', f's_add_u32 m0, s{sWv3072}, {RING0 + slot_of(j) * SLOT}')]
        if j < 20:
            seq.append(('s', f's_mov_b32 s{sOff}, {j * 32 * 12288}'))
            for n in range(3):
                seq.append(('m', f'buffer_load_dwordx4 v{vWd[n]}, s[{sW}:{sW + 3}], s{sOff} offen offset:{1024 * n}{nt_w} lds', ('st', j)))
        else:
            seq.append(('s', f's_mov_b32 s{sOff}, {(j - 20) * 12288}'))
            for n in range(3):
                seq.append(('m', f'buffer_load_dwordx4 v{vKd[n]}, s[{sK}:{sK + 3}], s{sOff} offen offset:{1024 * n}{nt_k} lds', ('st', j)))
        return seq

    def v_dma(sl, q):
        base = 65536 if sl == 1 else 0
        return [('s', f's_add_u32 m0, s{sWv1024}, {base + q * 4096}'),
                ('s', f's_mov_b32 s{sOff}, {q * 12288 + sl * 128}'),
                ('m', f'buffer_load_dwordx4 v{vVd}, s[{sV}:{sV + 3}], s{sOff} offen{nt_v[sl]} lds', ('v', sl))]

    def h_load(s):
        seq = []
        if s % 4 == 0:
            seq.append(('s', f's_mov_b32 s{sH0}, {s * 1024}'))
            seq.append(('s', f's_mov_b32 s{sH1}, {40960 + s * 1024}'))
        for g in range(2):
            r = 4 * ((2 * s + g) % 32)
            seq.append(('m', f'buffer_load_dwordx4 a[{r}:{r + 3}], v{vL16}, s[{sH}:{sH + 3}], s{[sH0, sH1][g]} offen offset:{(s % 4) * 1024}', None))
        return seq

    for j in range(PRO):
        for x in ring_dma(j) + h_load(2 * j) + h_load(2 * j + 1):
            p(x[1], x[2] if x[0] == 'm' else None)

    p(f's_mul_i32 s6, s3, 786432')
    p(f's_add_u32 s6, s6, {1536 * 384}')
    srd_off(p, sK, 40, 's6', 196608)
    srd_off(p, sV, 42, 's6', 196608)
    p(f's_mul_i32 s6, s5, {O_RG}')
    p(f's_mul_i32 s7, s3, 12288')
    p(f's_add_u32 s6, s6, s7')
    p(f's_add_u32 s6, s6, {WS_O}')
    srd_off(p, sO, 46, 's6', O_RG + 12288)
    vPF, vPV, vPD = 254, 255, 251
    if pf_tail or pf_v:
        p(f"""
        v_lshlrev_b32 v{vPF}, 7, v2
        v_mul_u32_u24 v{vPV}, 384, v2
        v_cmp_lt_u32 vcc, 15, v2
        v_mov_b32 v3, 0x40000000
        v_cndmask_b32 v{vPF}, v{vPF}, v3, vcc
        v_cndmask_b32 v{vPV}, v{vPV}, v3, vcc
        s_lshl_b32 s90, s2, 2
        s_add_u32 s90, s90, s{sWave}
        s_mul_i32 s90, s90, 1920
        s_lshl_b32 s91, s4, 2
        s_add_u32 s91, s91, s{sWave}
        s_mul_i32 s91, s91, 6144
        """)
    if pf_tail:
        p(f"""
        s_mov_b32 s78, {6144 * 1280}
        s_mov_b32 s79, 0x20000
        s_mov_b32 s82, {1536 * 1280}
        s_mov_b32 s83, 0x20000
        s_mov_b32 s92, s90
        """)
    pf_jobs = {}
    if pf_v:
        for x in range(2):
            pf_jobs.setdefault(pf_v[x], []).append(('m', f'buffer_load_dword v{vPD}, v{vPV}, s[{sV}:{sV + 3}], s91 offen offset:{128 + 128 * x}', 'pf'))
    if pf_tail:
        for x in range(4):
            pf_jobs.setdefault(pf_tail[x], []).extend([('m', f'buffer_load_dword v{vPD}, v{vPF}, s[76:79], s92 offen', 'pf'),
                                                       ('s', f's_add_u32 s92, s92, {1536 * 1280}')])
        for x in range(len(pf_tail) - 4):
            pf_jobs.setdefault(pf_tail[4 + x], []).extend([('s', f's_mov_b64 s[80:81], s[{84 + 2 * x}:{85 + 2 * x}]'),
                                                           ('m', f'buffer_load_dword v{vPD}, v{vPF}, s[80:83], s90 offen', 'pf')])
    kb0 = RING0
    p(f"""
    v_lshrrev_b32 v3, 5, v2
    v_lshrrev_b32 v4, 4, v2
    v_and_b32 v4, 1, v4
    v_lshrrev_b32 v5, 2, v2
    v_and_b32 v5, 3, v5
    v_and_b32 v6, 3, v2
    v_lshrrev_b32 v7, 1, v5
    """)
    p(f"""
    v_lshl_add_u32 v8, v3, 3, v5
    v_mul_u32_u24 v8, 384, v8
    v_and_b32 v9, 1, v6
    v_lshlrev_b32 v9, 4, v9
    v_lshrrev_b32 v10, 1, v6
    v_lshl_add_u32 v9, v10, 3, v9
    v_lshl_add_u32 v9, v4, 5, v9
    v_add_u32 v8, v8, v9
    v_add_u32 v8, {kb0}, v8
    v_lshl_add_u32 v{vWe}, v7, 6, v8
    v_xor_b32 v10, 1, v7
    v_lshl_add_u32 v{vWo}, v10, 6, v8
    v_lshl_add_u32 v8, v3, 2, v5
    v_lshlrev_b32 v8, 7, v8
    v_lshl_add_u32 v8, v7, 6, v8
    v_lshl_add_u32 v8, v4, 5, v8
    v_lshl_add_u32 v{vV}, v6, 3, v8
    v_and_b32 v8, 31, v2
    v_lshrrev_b32 v9, 1, v8
    v_and_b32 v9, 7, v9
    v_mul_u32_u24 v8, 384, v8
    v_add_u32 v8, {kb0}, v8
    """)
    for t in range(4):
        p(f"""
        v_add_u32 v10, {2 * t}, v3
        v_xor_b32 v10, v10, v9
        v_lshl_add_u32 v{vK[t]}, v10, 4, v8
        """)
    p(f"""
    v_lshrrev_b32 v8, 3, v2
    v_mul_u32_u24 v8, 384, v8
    v_and_b32 v9, 7, v2
    v_lshlrev_b32 v10, 2, v4
    v_xor_b32 v9, v9, v10
    v_lshl_add_u32 v8, v9, 4, v8
    v_add_u32 v{vVd}, s{sWv3072}, v8
    v_mov_b32 v{vl[0][0]}, 0
    v_mov_b32 v{vl[0][1]}, 0
    v_mov_b32 v{vl[1][0]}, 0
    v_mov_b32 v{vl[1][1]}, 0
    v_mov_b32 v{vm[0]}, 0xff800000
    v_mov_b32 v{vm[1]}, 0xff800000
    """)

    frags = []
    for j in range(18):
        for sp in range(2):
            for t in range(6):
                frags.append(dict(k='w', st=j, sp=sp, t=t))
    for t in range(6):
        for j in (18, 19):
            for sp in range(2):
                frags.append(dict(k='w', st=j, sp=sp, t=t))
    for i in range(16):
        for s in range(12):
            frags.append(dict(k='k', st=20 + i, i=i, s=s))
    for t in range(6):
        for u in range(32):
            frags.append(dict(k='v', t=t, u=u))
    NF = len(frags)
    w = Weave()
    for n, f in enumerate(frags):
        A = f'a[{AR + 4 * (n % 8)}:{AR + 4 * (n % 8) + 3}]'
        for g in range(2):
            if f['k'] == 'w':
                s = 2 * f['st'] + f['sp']
                d = acc(f['t'], g)
                hb = 4 * ((2 * s + g) % 32)
                B = f'a[{hb}:{hb + 3}]'
                C = '0' if s == 0 else f'v[{d}:{d + 15}]'
            elif f['k'] == 'k':
                d = SB[f['i'] % 2] + 16 * g
                qb = QA + 4 * (12 * g + f['s'])
                B = f'a[{qb}:{qb + 3}]'
                if f['s'] == 0:
                    C = '0' if f['i'] < 2 else f'v[{CB + 16 * g}:{CB + 16 * g + 15}]'
                else:
                    C = f'v[{d}:{d + 15}]'
            else:
                d = SB[f['t'] % 2] + 16 * g
                B = f"{'va'[g]}[{4 * f['u']}:{4 * f['u'] + 3}]"
                C = '0' if f['u'] == 0 else f'v[{d}:{d + 15}]'
            w.add_mfma(f'v_mfma_f32_32x32x16_bf16 v[{d}:{d + 15}], {A}, {B}, {C}')
    NG = 2 * NF

    state = dict(wb=RING0, kb=RING0, vx=0)
    state_at = {}
    pre = Prog()

    def read_texts(n):
        f = frags[n]
        ar = AR + 4 * (n % 8)
        fix, rd = [], []
        if f['k'] in 'wk':
            so = RING0 + slot_of(f['st']) * SLOT
            key = 'wb' if f['k'] == 'w' else 'kb'
            cur = state[key]
            if not (0 <= so - cur and so - cur + SLOT <= 65536):
                if f['k'] == 'w' and f['st'] >= 18:
                    nb = RING0 + slot_of(18) * SLOT
                else:
                    nb = RING0 if slot_of(f['st']) < 5 else RING0 + 3 * SLOT
                for r in ([vWe, vWo] if f['k'] == 'w' else vK):
                    fix.append(f'v_add_u32 v{r}, {(nb - cur) & 0xffffffff}, v{r}')
                state[key] = cur = nb
            if f['k'] == 'w':
                for x in range(2):
                    off = so - cur + (f['t'] // 2) * 128 + (16 * f['sp'] + 4 * x) * 384
                    rd.append(f"ds_read_b64_tr_b16 a[{ar + 2 * x}:{ar + 2 * x + 1}], v{[vWe, vWo][f['t'] % 2]} offset:{off}")
            else:
                off = so - cur + (f['s'] // 4) * 128
                rd.append(f"ds_read_b128 a[{ar}:{ar + 3}], v{vK[f['s'] % 4]} offset:{off}")
        else:
            want = (65536 if f['t'] // 2 == 1 else 0) | (64 if f['t'] % 2 else 0)
            if want != state['vx']:
                fix.append(f"v_xor_b32 v{vV}, {want ^ state['vx']}, v{vV}")
                state['vx'] = want
            for x in range(2):
                rd.append(f"ds_read_b64_tr_b16 a[{ar + 2 * x}:{ar + 2 * x + 1}], v{vV} offset:{2048 * f['u'] + 1024 * x}")
        return fix, rd

    rdtext = {}
    for n in range(NF):
        state_at[n] = dict(state)
        fix, rd = read_texts(n)
        rdtext[n] = rd
        if n < L:
            for x in fix + rd:
                pre(x)
        else:
            g = 2 * (n - L)
            for x in fix:
                w.valu[g - 1].append(Ins(x))
            for k, x in enumerate(rd):
                w.memop(g + k, x)
    state_at[NF] = dict(state)

    first = {}
    last = {}
    for n, f in enumerate(frags):
        if 'st' in f:
            first.setdefault(f['st'], n)
            last[f['st']] = n
    NPV = 240 + 192
    bars = {}
    for j in range(1, 36):
        if j == 19:
            continue
        bars[first[j]] = [('st', j)] + ([('st', 19)] if j == 18 else [])
    bars[first[35]].append(('v', 0))
    X1 = NPV + 22 + L
    X2 = NPV + 64 + L + 1
    X3 = NPV + 128
    bars[X1] = [('v', 1), 'vote']
    bars[X2] = []
    bars[X3] = [('v', 2)]
    for n in range(1, NF):
        regs = w.mfma[2 * n].srcAB | w.mfma[2 * n + 1].srcAB
        tags = bars.get(n + L, [])
        w.scalar(2 * n - 1, Need(regs, tags))
    for nb in bars:
        w.scalar(2 * (nb - L), 's_barrier')

    cur = dict(m0=0, h=0)
    vm_gap = set()
    issued = []

    def place_seq(g, seq, chan, rec=False):
        g = max(g, cur[chan])
        lastsc = lastm = -1
        for x in seq:
            if x[0] == 's':
                g = w.free_scalar_gap(max(g, lastm + 1))
                w.scalar(g, x[1])
                lastsc = g
            else:
                if g <= lastsc:
                    g = lastsc + 1
                while g in vm_gap or (480 <= g < 2 * NPV - 2 * L and g % 2 == 0):
                    g += 1
                w.memop(g, x[1], x[2])
                vm_gap.add(g)
                lastm = g
            if rec:
                issued.append((g, x))
        cur[chan] = g + 1
        return g

    nxt = PRO
    hn = 2 * PRO
    vq = [0, 0, 0]
    barlist = [L] + sorted(bars)
    for nb in barlist:
        g = 2 * (nb - L) + 1
        done = nb - L
        cnt = 0
        while nxt < 36 and cnt < 2 and (nxt < 8 or last[nxt - 8] <= done) and first[nxt] <= nb + 6 * 12 + 1:
            place_seq(g, ring_dma(nxt), 'm0', rec=nxt >= 21)
            if nxt in pf_jobs:
                place_seq(g, pf_jobs[nxt], 'm0')
            nxt += 1
            cnt += 1
        cnt = 0
        while hn < 40 and cnt < 3 and hn < nb // 6 + 13:
            place_seq(g, h_load(hn), 'h')
            hn += 1
            cnt += 1
        if hn >= 40 and cnt == 0 and nb < 240:
            for _ in range(7 if nb >= first[18] else 3):
                if vq[0] < 16:
                    assert place_seq(g, v_dma(0, vq[0]), 'm0') < 480
                    vq[0] += 1
        if nxt >= 36:
            while vq[1] < 16 and last[28 + vq[1] // 3] <= done:
                place_seq(g, v_dma(1, vq[1]), 'm0')
                vq[1] += 1
        if nb == X2:
            for q in range(16):
                place_seq(g, v_dma(2, q), 'm0')
    assert vq[0] == 16 and vq[1] == 16 and hn == 40 and nxt == 36, (vq, hn, nxt)

    g = 0
    for t in range(6):
        gl = 2 * (216 + 4 * t + 3) + 1
        items = []
        for f2 in range(2):
            for gq in range(2):
                b = acc(t, gq) + 8 * f2
                for d in range(4):
                    items.append(f'v_cvt_pk_bf16_f32 v{b + d}, v{b + 2 * d}, v{b + 2 * d + 1}')
                for d in range(4):
                    items.append(f'v_accvgpr_write_b32 a{QA + 4 * (12 * gq + 2 * t + f2) + d}, v{b + d}')
        g = w.stream(max(g, gl + 4), NG - 1, items)
        assert g <= 480 + 4 * t - 2, (t, g)

    M = lambda i: 480 + 24 * i
    items = []
    for gq in range(2):
        b = SB[0] + 16 * gq
        for k in range(8):
            items.append(f'v_max3_f32 v{vm[gq]}, v{vm[gq]}, v{b + 2 * k}, v{b + 2 * k + 1}')
    items += [f'v_mov_b32 v{vt}, v{vm[0]}', f'v_mov_b32 v{vt2}, v{vm[1]}', 's_nop 0',
              f'v_permlane32_swap_b32 v{vm[0]}, v{vt}', f'v_permlane32_swap_b32 v{vm[1]}, v{vt2}',
              f'v_max_f32 v{vm[0]}, v{vm[0]}, v{vt}', f'v_max_f32 v{vm[1]}, v{vm[1]}, v{vt2}',
              f'v_sub_f32 v{vm[0]}, {f2h(-MOFF)}, v{vm[0]}', f'v_sub_f32 v{vm[1]}, {f2h(-MOFF)}, v{vm[1]}']
    for gq in range(2):
        for k in range(16):
            items.append(f'v_mov_b32 v{CB + 16 * gq + k}, v{vm[gq]}')
    g = w.stream(M(1) + 2, M(1) + 23, items, cap=10)
    E, A = softmax_items(SB[0], 0, True)
    place_softmax(w, g, M(1) + 23, E, A, cap=10)
    E, A = softmax_items(SB[1], 1, True)
    place_softmax(w, M(2), M(2) + 23, E, A, cap=7)
    for i in range(2, 15):
        E, A = softmax_items(SB[i % 2], i, False)
        place_softmax(w, M(i + 1), M(i + 1) + 23, E, A)
    E, A = softmax_items(SB[1], 15, False)
    g = place_softmax(w, M(16), M(16) + 30, E, A)
    items = [f'v_add_f32 v{vl[0][0]}, v{vl[0][0]}, v{vl[0][1]}', f'v_add_f32 v{vl[1][0]}, v{vl[1][0]}, v{vl[1][1]}',
             f'v_mov_b32 v{vl[0][1]}, v{vl[0][0]}', f'v_mov_b32 v{vl[1][1]}, v{vl[1][0]}',
             f'v_mov_b32 v{vt}, {f2h(LMAX)}', f'v_mov_b32 v{vt2 + 4}, {VOTE}',
             f'v_permlane32_swap_b32 v{vl[0][0]}, v{vl[0][1]}', f'v_permlane32_swap_b32 v{vl[1][0]}, v{vl[1][1]}',
             f'v_add_f32 v{vl[0][0]}, v{vl[0][0]}, v{vl[0][1]}', f'v_add_f32 v{vl[1][0]}, v{vl[1][0]}, v{vl[1][1]}',
             f'v_cmp_nle_f32 s[48:49], v{vl[0][0]}, v{vt}', f'v_cmp_nle_f32 s[50:51], v{vl[1][0]}, v{vt}',
             f'v_rcp_f32 v{vri[0]}, v{vl[0][0]}', f'v_rcp_f32 v{vri[1]}, v{vl[1][0]}',
             f'v_lshl_add_u32 v{vt2 + 5}, s{sWave}, 2, v{vt2 + 4}',
             's_or_b64 s[48:49], s[48:49], s[50:51]', 's_or_b32 s48, s48, s49',
             f'v_mov_b32 v{vt}, s48']
    g = w.stream(g + 1, NG - 1, items)
    w.memop(g + 1, f'ds_write_b32 v{vt2 + 5}, v{vt}', 'vote')
    assert g + 1 < 2 * (X1 - L) - 1, (g, X1)
    gx = 2 * (X1 - L)
    w.memop(gx + 1, f'ds_read_b128 v[{vt2}:{vt2 + 3}], v{vt2 + 4}')
    items = [f'v_or3_b32 v{vt2}, v{vt2}, v{vt2 + 1}, v{vt2 + 2}', f'v_or_b32 v{vt2}, v{vt2}, v{vt2 + 3}', 's_nop 0',
             f'v_readfirstlane_b32 s48, v{vt2}']
    g = w.stream(gx + 10, NG - 1, items)
    gbr = 2 * (NPV + 32) - 1
    assert g + 2 < gbr
    w.post[gbr - 1] += [Ins(f's_andn2_b32 s48, s48, s{sRedo}')]
    w.post[gbr] += [Ins('s_cmp_lg_u32 s48, 0'), Ins('s_cbranch_scc1 L_att_redo')]

    def epi_items(t):
        out = []
        for gq in range(2):
            for f2 in range(2):
                b = SB[t % 2] + 16 * gq + 8 * f2
                it = [f'v_mul_f32 v{b + k}, v{vri[gq]}, v{b + k}' for k in range(8)]
                it += [f'v_cvt_pk_bf16_f32 v{b + d}, v{b + 2 * d}, v{b + 2 * d + 1}' for d in range(4)]
                st = f'buffer_store_dwordx4 v[{b}:{b + 3}], v{vL16}, s[{sO}:{sO + 3}], s{[sO0, sO1][gq]} offen offset:{(t % 2) * 2048 + f2 * 1024}{st_flag}'
                out.append((it, st))
        return out

    def osal(t):
        return [f's_mov_b32 s{sO0}, {(t // 2) * 4096}', f's_mov_b32 s{sO1}, {O_RG + (t // 2) * 4096}']

    for t in range(5):
        g0 = 2 * (NPV + 32 * (t + 1))
        g = g0
        if t % 2 == 0:
            for x in osal(t):
                g = w.free_scalar_gap(g)
                w.scalar(g, x)
        g = g0 + 4
        for it, st in epi_items(t):
            g = w.stream(g, NG - 1, it, cap=4)
            g += 1
            while g in vm_gap:
                g += 1
            w.memop(g, st)
            vm_gap.add(g)
            g += 4
        assert g < g0 + 60

    w.report('att')
    if prof:
        for k, gg in enumerate([0, 479, 863]):
            w.post[gg] += [Ins(f's_memtime s[{62 + 2 * k}:{63 + 2 * k}]'), Ins('s_waitcnt lgkmcnt(0)')]

    w.post[M(1) - 1].append(Ins('L_att_t1:'))
    p.add(Need('', [('st', 0)]))
    p('s_barrier')
    p.add(pre.items)
    p.add(Need(w.mfma[0].srcAB | w.mfma[1].srcAB))
    w.emit(p)
    for it, st in epi_items(5):
        p.add(it)
        p(st)
    if prof:
        p(f"""
        s_memtime s[68:69]
        s_waitcnt vmcnt(0) lgkmcnt(0)
        s_memtime s[70:71]
        s_memrealtime s[74:75]
        s_waitcnt lgkmcnt(0)
        s_lshl_b32 s6, s2, 2
        s_add_u32 s6, s6, s{sWave}
        s_lshl_b32 s6, s6, 5
        s_add_u32 s6, s6, 0x8000000
        """)
        srd_off(p, 52, 46, 's6', 32)
        for k in range(5):
            p(f's_sub_u32 s{62 + 2 * k}, s{62 + 2 * k}, s60')
            p(f'v_mov_b32 v{k}, s{62 + 2 * k}')
        p('v_mov_b32 v8, 0')
        p('v_mov_b32 v5, s72')
        p('v_mov_b32 v6, s74')
        p('buffer_store_dwordx4 v[0:3], v8, s[52:55], 0 offen')
        p('buffer_store_dwordx4 v[4:7], v8, s[52:55], 0 offen offset:16')
    p('L_att_end:')
    p('s_endpgm')

    n1 = 240 + 12
    s_br = state_at[NPV + 32 + L]
    s_t1 = state_at[n1]
    assert state_at[n1 + L]['kb'] == state_at[n1 + 1]['kb']
    kb_t1 = state_at[n1 + L]['kb']
    p('L_att_redo:')
    p('s_waitcnt vmcnt(0) lgkmcnt(0)')
    p.add(Reset())
    p(f"""
    s_nop 15
    s_barrier
    s_mov_b32 s{sRedo}, -1
    v_mov_b32 v{vl[0][0]}, 0
    v_mov_b32 v{vl[0][1]}, 0
    v_mov_b32 v{vl[1][0]}, 0
    v_mov_b32 v{vl[1][1]}, 0
    v_mov_b32 v{vm[0]}, 0xff800000
    v_mov_b32 v{vm[1]}, 0xff800000
    v_lshrrev_b32 v{vt}, 4, v{vL16}
    v_lshrrev_b32 v{vt2}, 5, v{vt}
    v_and_b32 v{vt}, 31, v{vt}
    v_mul_u32_u24 v{vt}, 384, v{vt}
    v_lshl_add_u32 v{vt}, v{vt2}, 4, v{vt}
    s_mov_b32 s48, {15 * 12288}
    """)
    for r in vK:
        p(f'v_add_u32 v{r}, {(kb_t1 - s_br["kb"]) & 0xffffffff}, v{r}')
    if s_br['vx']:
        p(f'v_xor_b32 v{vV}, {s_br["vx"]}, v{vV}')
    for (g, x) in issued:
        if g < M(1):
            p(x[1])
    p('L_att_redo_loop:')
    for s in range(12):
        p(f'buffer_load_dwordx4 v[{4 * s}:{4 * s + 3}], v{vt}, s[{sK}:{sK + 3}], s48 offen offset:{32 * s}')
    p('s_waitcnt vmcnt(0)')
    for s in range(12):
        for g in range(2):
            d = SB[0] + 16 * g
            qb = QA + 4 * (12 * g + s)
            p(f"v_mfma_f32_32x32x16_bf16 v[{d}:{d + 15}], v[{4 * s}:{4 * s + 3}], a[{qb}:{qb + 3}], {'0' if s == 0 else f'v[{d}:{d + 15}]'}")
    p('s_nop 15')
    for g in range(2):
        b = SB[0] + 16 * g
        for k in range(8):
            p(f'v_max3_f32 v{vm[g]}, v{vm[g]}, v{b + 2 * k}, v{b + 2 * k + 1}')
    p("""
    s_sub_u32 s48, s48, 12288
    s_cbranch_scc0 L_att_redo_loop
    s_barrier
    """)
    for n in range(n1, n1 + L):
        for x in rdtext[n]:
            p(x)
    p("""
    s_waitcnt vmcnt(0) lgkmcnt(0)
    s_nop 7
    s_branch L_att_t1
    """)
    st = p.resolve_waits()
    nn = p.fix_hazards(verbose=True)
    print('att waits', st, 'nops', nn)
    return kernel_text('att_kernel', p, 256, 256, 96), ('att_kernel', 256, 256, 163840)
```

```python
from asmgen import *
from layout import *


def srd(p, s, base_lo, base_hi, size):
    if base_lo != s:
        p(f's_mov_b32 s{s}, s{base_lo}')
        p(f's_mov_b32 s{s + 1}, s{base_hi}')
    p(f's_mov_b32 s{s + 2}, {size}')
    p(f's_mov_b32 s{s + 3}, 0x20000')


def srd_off(p, s, ptr, off, size):
    p(f's_add_u32 s{s}, s{ptr}, {off}')
    p(f's_addc_u32 s{s + 1}, s{ptr + 1}, 0')
    p(f's_mov_b32 s{s + 2}, {size}')
    p(f's_mov_b32 s{s + 3}, 0x20000')


def code_prefetch(p, lab0, lab1, sreg, vtmp, vdst, soff=None):
    u = f'L_pc_{lab0}_{sreg}_{len(p.items)}'
    p(f"""
    s_getpc_b64 s[{sreg}:{sreg + 1}]
    {u}:
    s_add_u32 s{sreg}, s{sreg}, {lab0}-{u}
    s_addc_u32 s{sreg + 1}, s{sreg + 1}, 0
    s_mov_b32 s{sreg + 2}, {lab1}-{lab0}
    s_mov_b32 s{sreg + 3}, 0x20000
    v_lshlrev_b32 v{vtmp}, 7, v0
    """)
    p(f"buffer_load_dword v{vdst}, v{vtmp}, s[{sreg}:{sreg + 3}], {soff or 0} offen", 'pf')


def gen_mod(pf_code=False):
    p = Prog()
    if pf_code:
        p('s_lshr_b32 s3, s2, 3')
        p('s_lshl_b32 s3, s3, 15')
        code_prefetch(p, 'ln1_kernel', 'L_code_end', 28, 54, 55, 's3')
    p(f"""
    s_and_b32 s3, s2, 7
    s_lshr_b32 s20, s2, 5
    s_lshl_b32 s20, s20, 3
    s_add_u32 s20, s20, s3
    s_cmp_ge_u32 s20, 60
    s_cbranch_scc1 L_mod_end
    s_load_dwordx4 s[4:7], s[0:1], 72
    s_load_dwordx2 s[16:17], s[0:1], 104
    s_lshr_b32 s21, s2, 3
    s_and_b32 s21, s21, 3
    s_lshl_b32 s20, s20, 6
    s_lshl_b32 s21, s21, 4
    s_add_u32 s20, s20, s21
    s_lshl_b32 s22, s20, 1
    v_lshrrev_b32 v1, 1, v0
    v_and_b32 v2, 1, v0
    v_mul_u32_u24 v3, 7680, v1
    v_lshl_add_u32 v3, v2, 4, v3
    v_lshlrev_b32 v4, 1, v1
    s_waitcnt lgkmcnt(0)
    """)
    srd(p, 8, 4, 5, 1280)
    srd(p, 12, 6, 7, 640 * 7680)
    srd(p, 16, 16, 17, 15360)
    for it in range(5):
        p(f's_add_u32 s23, s22, {it * 128 * 7680}')
        p(f'buffer_load_dwordx4 v[{16 + 4 * it}:{19 + 4 * it}], v3, s[12:15], s23 offen nt')
    for it in range(5):
        p(f'buffer_load_ushort v{8 + it}, v4, s[8:11], 0 offen offset:{256 * it}')
    for it in range(5):
        p(f'v_lshlrev_b32 v{8 + it}, 16, v{8 + it}')
        p(f'v_mul_f32 v{36 + it}, 0xbfb8aa3b, v{8 + it}')
    for it in range(5):
        p(f'v_exp_f32 v{36 + it}, v{36 + it}')
    for it in range(5):
        p(f'v_add_f32 v{36 + it}, 1.0, v{36 + it}')
    for it in range(5):
        p(f'v_rcp_f32 v{36 + it}, v{36 + it}')
    for it in range(5):
        p(f'v_mul_f32 v{8 + it}, v{8 + it}, v{36 + it}')
    for it in range(5):
        for d in range(4):
            p(f'v_lshlrev_b32 v52, 16, v{16 + 4 * it + d}')
            p(f'v_and_b32 v53, 0xffff0000, v{16 + 4 * it + d}')
            if it == 0:
                p(f'v_mul_f32 v{44 + 2 * d}, v52, v{8 + it}')
                p(f'v_mul_f32 v{45 + 2 * d}, v53, v{8 + it}')
            else:
                p(f'v_fmac_f32 v{44 + 2 * d}, v52, v{8 + it}')
                p(f'v_fmac_f32 v{45 + 2 * d}, v53, v{8 + it}')
    for rot in (2, 4, 8):
        for e in range(8):
            p(f'v_add_f32_dpp v{44 + e}, v{44 + e}, v{44 + e} row_ror:{rot} row_mask:0xf bank_mask:0xf')
    p("""
    v_lshrrev_b32 v5, 4, v0
    v_lshlrev_b32 v5, 6, v5
    v_lshl_add_u32 v5, v2, 5, v5
    v_and_b32 v6, 15, v0
    v_cmp_gt_u32 vcc, 2, v6
    s_and_saveexec_b64 s[24:25], vcc
    ds_write_b128 v5, v[44:47]
    ds_write_b128 v5, v[48:51] offset:16
    s_mov_b64 exec, s[24:25]
    s_waitcnt lgkmcnt(0)
    s_barrier
    v_cmp_gt_u32 vcc, 16, v0
    s_and_saveexec_b64 s[24:25], vcc
    s_cbranch_execz L_mod_end
    v_lshlrev_b32 v5, 2, v0
    """)
    for i in range(16):
        p(f'ds_read_b32 v{16 + i}, v5 offset:{64 * i}')
    for st in (8, 4, 2, 1):
        for i in range(st):
            p(f'v_add_f32 v{16 + i}, v{16 + i}, v{16 + i + st}')
    p("""
    s_lshl_b32 s22, s20, 2
    buffer_store_dword v16, v5, s[16:19], s22 offen
    L_mod_end:
    s_endpgm
    """)
    p.resolve_waits()
    p.fix_hazards()
    return kernel_text('mod_kernel', p, 56, 0, 32), ('mod_kernel', 256, 256, 1024)


def row_reduce(p, v, t, vaddr_w, vaddr_r, off, r0):
    p(f"""
    v_add_f32_dpp v{v}, v{v}, v{v} row_ror:8 row_mask:0xf bank_mask:0xf
    v_mov_b32 v{t}, v{v}
    v_permlane16_swap_b32 v{v}, v{t}
    v_add_f32 v{v}, v{v}, v{t}
    v_mov_b32 v{t}, v{v}
    v_permlane32_swap_b32 v{v}, v{t}
    v_add_f32 v{v}, v{v}, v{t}
    ds_write_b32 v{vaddr_w}, v{v} offset:{off}
    s_waitcnt lgkmcnt(0)
    s_barrier
    ds_read_b128 v[{r0}:{r0 + 3}], v{vaddr_r} offset:{off}
    ds_read_b128 v[{r0 + 4}:{r0 + 7}], v{vaddr_r} offset:{off + 16}
    ds_read_b64 v[{r0 + 8}:{r0 + 9}], v{vaddr_r} offset:{off + 32}
    """)
    for i in range(5):
        p(f'v_add_f32 v{r0 + i}, v{r0 + i}, v{r0 + 5 + i}')
    p(f"""
    v_add_f32 v{r0}, v{r0}, v{r0 + 1}
    v_add_f32 v{r0 + 2}, v{r0 + 2}, v{r0 + 3}
    v_add_f32 v{r0}, v{r0}, v{r0 + 4}
    v_add_f32 v{v}, v{r0}, v{r0 + 2}
    """)


def ln_core(p, X, G, B, scale):
    p(f"""
    v_add_f32 v56, v{X}, v{X + 1}
    v_add_f32 v57, v{X + 2}, v{X + 3}
    v_add_f32 v58, v{X + 4}, v{X + 5}
    v_add_f32 v59, v{X + 6}, v{X + 7}
    v_add_f32 v56, v56, v57
    v_add_f32 v58, v58, v59
    v_add_f32 v56, v56, v58
    """)
    row_reduce(p, 56, 57, 6, 7, 0, 60)
    p(f'v_mul_f32 v56, {f2h(-1.0 / 640)}, v56')
    for e in range(8):
        p(f'v_add_f32 v{X + e}, v{X + e}, v56')
    p(f'v_mul_f32 v56, v{X}, v{X}')
    p(f'v_mul_f32 v57, v{X + 1}, v{X + 1}')
    for e in range(2, 8):
        p(f'v_fmac_f32 v{56 + e % 2}, v{X + e}, v{X + e}')
    p('v_add_f32 v56, v56, v57')
    row_reduce(p, 56, 57, 6, 7, 512, 60)
    p(f'v_mov_b32 v57, {f2h(1e-5)}')
    p(f'v_fmac_f32 v57, {f2h(1.0 / 640)}, v56')
    p('v_rsq_f32 v57, v57')
    if scale != 1.0:
        for e in range(8):
            p(f'v_mul_f32 v{B + e}, {f2h(scale)}, v{B + e}')
        p(f'v_mul_f32 v57, {f2h(scale)}, v57')
    for e in range(8):
        p(f'v_add_f32 v{G + e}, 1.0, v{G + e}')
    for e in range(8):
        p(f'v_mul_f32 v{X + e}, v{X + e}, v57')
    for e in range(8):
        p(f'v_fmac_f32 v{B + e}, v{X + e}, v{G + e}')
    for d in range(4):
        p(f'v_cvt_pk_bf16_f32 v{X + d}, v{B + 2 * d}, v{B + 2 * d + 1}')


def ln_common(p, f16=False):
    sh = 1 if f16 else 2
    p(f"""
    v_and_b32 v1, 7, v0
    v_lshrrev_b32 v2, 3, v0
    s_and_b32 s20, s2, {(1 << sh) - 1}
    s_lshl_b32 s20, s20, 7
    v_lshlrev_b32 v5, {7 + sh}, v2
    v_lshl_add_u32 v5, v1, 4, v5
    v_add_u32 v5, s20, v5
    s_lshr_b32 s21, s2, {sh}
    s_mul_i32 s21, s21, {10240 << sh}
    v_lshrrev_b32 v8, 6, v0
    v_lshlrev_b32 v7, 6, v1
    v_lshl_add_u32 v6, v8, 2, v7
    s_mul_i32 s22, s2, 10240
    """)


def gen_ln1():
    p = Prog()
    p("""
    s_cmp_ge_u32 s2, 256
    s_cbranch_scc1 L_ln1_end
    s_load_dwordx2 s[4:5], s[0:1], 0
    s_load_dwordx2 s[6:7], s[0:1], 104
    """)
    ln_common(p)
    p("""
    v_mul_u32_u24 v3, 1280, v1
    v_lshl_add_u32 v3, v2, 4, v3
    v_lshlrev_b32 v4, 5, v2
    s_waitcnt lgkmcnt(0)
    """)
    srd(p, 8, 4, 5, 2621440)
    srd(p, 12, 6, 7, 15360)
    srd_off(p, 16, 6, WS_H, 2621440)
    p("""
    buffer_load_dwordx4 v[12:15], v3, s[8:11], s22 offen nt
    buffer_load_dwordx4 v[24:27], v4, s[12:15], 0 offen
    buffer_load_dwordx4 v[28:31], v4, s[12:15], 0 offen offset:16
    buffer_load_dwordx4 v[32:35], v4, s[12:15], 0 offen offset:2560
    buffer_load_dwordx4 v[36:39], v4, s[12:15], 0 offen offset:2576
    """)
    for d in range(4):
        p(f'v_lshlrev_b32 v{16 + 2 * d}, 16, v{12 + d}')
        p(f'v_and_b32 v{17 + 2 * d}, 0xffff0000, v{12 + d}')
    ln_core(p, 16, 32, 24, QSCALE)
    p("""
    buffer_store_dwordx4 v[16:19], v5, s[16:19], s21 offen
    L_ln1_end:
    s_endpgm
    """)
    p.resolve_waits()
    p.fix_hazards()
    return kernel_text('ln1_kernel', p, 72, 0, 32), ('ln1_kernel', 256, 640, 1024)


def gen_ln2():
    p = Prog()
    p("""
    s_cmp_ge_u32 s2, 256
    s_cbranch_scc1 L_ln2_end
    s_load_dwordx2 s[4:5], s[0:1], 0
    s_load_dwordx2 s[6:7], s[0:1], 104
    """)
    ln_common(p, True)
    p("""
    v_mul_u32_u24 v3, 1280, v1
    v_lshl_add_u32 v3, v2, 4, v3
    v_lshlrev_b32 v4, 5, v2
    s_waitcnt lgkmcnt(0)
    """)
    srd(p, 8, 4, 5, 2621440)
    srd(p, 12, 6, 7, 15360)
    srd_off(p, 16, 6, WS_PART, NSPLIT * 2621440)
    srd_off(p, 24, 6, WS_H2, 2621440)
    srd_off(p, 28, 6, WS_X1, 2621440)
    for s in range(NSPLIT):
        p(f's_add_u32 s23, s21, {s * 2621440}')
        p(f'buffer_load_dwordx4 v[{72 + 4 * s}:{75 + 4 * s}], v5, s[16:19], s23 offen')
    p(f"""
    buffer_load_dwordx4 v[12:15], v3, s[8:11], s22 offen
    s_mov_b32 s23, {2 * 2560}
    buffer_load_dwordx4 v[40:43], v4, s[12:15], s23 offen
    buffer_load_dwordx4 v[44:47], v4, s[12:15], s23 offen offset:16
    buffer_load_dwordx4 v[24:27], v4, s[12:15], s23 offen offset:2560
    buffer_load_dwordx4 v[28:31], v4, s[12:15], s23 offen offset:2576
    s_mov_b32 s23, {4 * 2560}
    buffer_load_dwordx4 v[32:35], v4, s[12:15], s23 offen
    buffer_load_dwordx4 v[36:39], v4, s[12:15], s23 offen offset:16
    """)
    for s in range(NSPLIT):
        for d in range(4):
            if s == 0:
                p(f'v_lshlrev_b32 v{48 + 2 * d}, 16, v{72 + d}')
                p(f'v_and_b32 v{49 + 2 * d}, 0xffff0000, v{72 + d}')
            else:
                p(f'v_lshlrev_b32 v56, 16, v{72 + 4 * s + d}')
                p(f'v_and_b32 v57, 0xffff0000, v{72 + 4 * s + d}')
                p(f'v_add_f32 v{48 + 2 * d}, v{48 + 2 * d}, v56')
                p(f'v_add_f32 v{49 + 2 * d}, v{49 + 2 * d}, v57')
    for d in range(4):
        p(f'v_lshlrev_b32 v{16 + 2 * d}, 16, v{12 + d}')
        p(f'v_and_b32 v{17 + 2 * d}, 0xffff0000, v{12 + d}')
    for e in range(8):
        p(f'v_fmac_f32 v{16 + e}, v{40 + e}, v{48 + e}')
    for d in range(4):
        p(f'v_cvt_pk_bf16_f32 v{12 + d}, v{16 + 2 * d}, v{17 + 2 * d}')
    p('buffer_store_dwordx4 v[12:15], v5, s[28:31], s21 offen')
    ln_core(p, 16, 32, 24, 1.0)
    p("""
    buffer_store_dwordx4 v[16:19], v5, s[24:27], s21 offen
    L_ln2_end:
    s_endpgm
    """)
    p.resolve_waits()
    p.fix_hazards()
    return kernel_text('ln2_kernel', p, 72 + 4 * NSPLIT, 0, 40), ('ln2_kernel', 256, 640, 1024)
```

```python
import sys
from k_small import *
from k_att import gen_att
from k_gemm import gen_p4, gen_p6, gen_p7
HEAD = open('adaLN_cond__sliding_block_cached__geglu_ffn__prompt.s.ref').read().split('; Override launch')[0]
def build(kernels, path):
    out = HEAD
    for (_, _), (name, grid, block, lds) in kernels:
        out += f'; @launch kernel={name} grid=({grid},1,1) block=({block},1,1) lds={lds}\n'
    out += '.amdgcn_target "amdgcn-amd-amdhsa--gfx950"\n'
    for (code, _), _ in kernels:
        out += code
    out += 'L_code_end:\n'
    for (_, desc), _ in kernels:
        out += desc
    open(path, 'w').write(out)
    print('wrote', path, len(out), 'bytes')
if __name__ == '__main__':
    prof = 'prof' in sys.argv
    kw = {}
    for a in sys.argv[2:]:
        if '=' in a:
            k, v = a.split('=', 1)
            kn, pn = k.split('.')
            try:
                v = eval(v)
            except Exception:
                pass
            kw.setdefault(kn, {})[pn] = v
    g = lambda n: kw.get(n, {})
    ks = [gen_mod(**g('mod')), gen_ln1(**g('ln1')), gen_att(prof=prof, **g('att')), gen_p4(prof=prof, **g('p4')), gen_ln2(), gen_p6(prof=prof, **g('p6')), gen_p7(prof=prof, **g('p7'))]
    if 'empty' in sys.argv:
        for i in range(3):
            p = Prog(); p('s_endpgm')
            ks.insert(0, (kernel_text(f'e{i}_kernel', p, 8, 0, 16), (f'e{i}_kernel', 256, 256, 0)))
    build(ks, sys.argv[1])
```

```python
from asmgen import *
from layout import *
from k_small import srd, srd_off
import math

MF = 'v_mfma_f32_16x16x32_bf16'
sWave = 36


def lane_setup(p):
    p(f"""
    v_lshrrev_b32 v1, 6, v0
    v_and_b32 v2, 63, v0
    v_readfirstlane_b32 s{sWave}, v1
    v_and_b32 v3, 15, v0
    v_lshrrev_b32 v4, 4, v2
    v_lshrrev_b32 v5, 2, v3
    v_and_b32 v6, 3, v0
    """)


def prof_begin(p):
    p('s_memtime s[60:61]')
    p('s_memrealtime s[72:73]')


def prof_stamp(k):
    return [Ins(f's_memtime s[{62 + 2 * k}:{63 + 2 * k}]'), Ins('s_waitcnt lgkmcnt(0)')]


def prof_end(p, wsptr, off):
    p(f"""
    s_memtime s[68:69]
    s_waitcnt vmcnt(0) lgkmcnt(0)
    s_memtime s[70:71]
    s_memrealtime s[74:75]
    s_waitcnt lgkmcnt(0)
    s_lshl_b32 s6, s2, 2
    s_add_u32 s6, s6, s{sWave}
    s_lshl_b32 s6, s6, 5
    s_add_u32 s6, s6, {off}
    """)
    srd_off(p, 52, wsptr, 's6', 32)
    for k in range(5):
        p(f's_sub_u32 s{62 + 2 * k}, s{62 + 2 * k}, s60')
        p(f'v_mov_b32 v{k}, s{62 + 2 * k}')
    p('v_mov_b32 v8, 0')
    p('v_mov_b32 v5, s72')
    p('v_mov_b32 v6, s74')
    p('buffer_store_dwordx4 v[0:3], v8, s[52:55], 0 offen')
    p('buffer_store_dwordx4 v[4:7], v8, s[52:55], 0 offen offset:16')


class Mark:
    def __init__(self, name):
        self.name = name


def emit_seq(p, seq):
    for x in seq:
        p(x[1], x[2] if x[0] == 'm' else None)


def step_weave(s, nst, NS, mfmas, reads, dma, needs, rdg, dmag, last_reads=True):
    w = Weave()
    w.CAP = 2
    M = mfmas(s)
    for m in M:
        w.add_mfma(m)
    G = len(M)
    more = (s + 1 < nst) or last_reads
    if more:
        w.scalar(0, 's_barrier')
        for k, r in enumerate(reads(s + 1)):
            w.memop(rdg[k], r)
    for lo, hi in needs:
        if lo > 0:
            regs = set().union(*[w.mfma[i].srcAB for i in range(lo, hi)])
            w.scalar(lo - 1, Need(regs))
    if more:
        lo, hi = needs[0]
        nm = [Ins(x) for x in mfmas(s + 1)]
        regs = set().union(*[nm[i].srcAB for i in range(lo, hi)])
        w.scalar(G - 1, Need(regs, [('st', s + 2)]))
    seq = dma(s + NS - 1)
    g = 1
    k = 0
    for x in seq:
        if x[0] == 's':
            g = w.free_scalar_gap(g, G - 1)
            w.scalar(g, x[1])
            assert k >= len(dmag) or g <= dmag[k], (g, k, dmag)
        else:
            w.memop(dmag[k], x[1], x[2])
            g = max(g, dmag[k] + 1)
            k += 1
    return w


def other(G, dmag, n):
    free = [g for g in range(G) if g not in dmag]
    assert n <= len(free)
    return free[:n]


def pipeline(p, nst, NS, mfmas, reads, dma, needs, rdg, dmag, body=None, label=None, cnt=None, prof=False):
    p.add(Need('', [('st', 0)]))
    p('s_barrier')
    if prof:
        p.add(prof_stamp(0))
    for r in reads(0):
        p(r)
    m0 = [Ins(x) for x in mfmas(0)]
    lo, hi = needs[0]
    p.add(Need(set().union(*[m0[i].srcAB for i in range(lo, hi)]), [('st', 1)]))
    if body is None:
        for s in range(nst):
            step_weave(s, nst, NS, mfmas, reads, dma, needs, rdg, dmag, last_reads=False).emit(p)
        return
    for it in range(3):
        p.add(Ins(f'L_mark_{it}:'))
        for s in range(it * body, (it + 1) * body):
            w = step_weave(s, 10 ** 9, NS, mfmas, reads, dma, needs, rdg, dmag)
            if s % body == body - 1:
                g = w.free_scalar_gap(2)
                w.scalar(g, f's_sub_u32 s{cnt}, s{cnt}, 1')
                kk = len(w.mfma) - 1
                w.post[kk] += [Ins(f's_cmp_lg_u32 s{cnt}, 0'), Ins(f's_cbranch_scc1 {label}')]
            w.emit(p)
    p.add(Ins('L_mark_3:'))


def fold_loop(p, label):
    idx = {}
    for i, x in enumerate(p.items):
        if x.kind == 'label' and x.text.startswith('L_mark_'):
            idx[int(x.text[7])] = i
    c = [[x.text for x in p.items[idx[k] + 1:idx[k + 1]]] for k in range(3)]
    import re
    def weaker(a, b):
        if len(a) != len(b):
            return False
        for x, y in zip(a, b):
            if x != y:
                mx, my = re.search(r'vmcnt\((\d+)\)', x), re.search(r'vmcnt\((\d+)\)', y)
                if not (mx and my and int(mx.group(1)) >= int(my.group(1)) and re.sub(r'vmcnt\(\d+\)', '', x) == re.sub(r'vmcnt\(\d+\)', '', y)):
                    return False
        return True
    if c[1] == c[2] and weaker(c[0], c[1]):
        p.items = p.items[:idx[0]] + [Ins(label + ':')] + p.items[idx[1] + 1:idx[2]] + p.items[idx[3] + 1:]
        return
    if not (c[0] == c[1] == c[2]):
        import difflib
        print('\n'.join(difflib.unified_diff(c[0], c[1], lineterm='', n=2)))
        print('\n'.join(difflib.unified_diff(c[1], c[2], lineterm='', n=2)))
        raise AssertionError('loop copies differ')
    p.items = p.items[:idx[0]] + [Ins(label + ':')] + p.items[idx[0] + 1:idx[1]] + p.items[idx[3] + 1:]


def gen_p4(prof=False, st_flag=' sc1', ntw='', NS=8, dmag=(4, 7, 10, 13), dbgW=False, dbgO=False, probar=0, nomfma=False):
    p = Prog()
    SLOT = 16384
    sW, sO, sP = 8, 12, 16
    sM, sKW, sKO, sCnt = 20, 21, 22, 23
    vA = [[128 + 4 * wdw + t for t in range(4)] for wdw in range(2)]
    vB = [136, 137]
    vWd = [138, 139]
    vL16 = 140
    vSt = 141
    p(f"""
    s_cmp_ge_u32 s2, 240
    s_cbranch_scc1 L_p4_end
    s_load_dwordx2 s[40:41], s[0:1], 32
    s_load_dwordx2 s[46:47], s[0:1], 104
    """)
    if prof:
        prof_begin(p)
    lane_setup(p)
    p(f"""
    s_and_b32 s3, s2, 7
    s_lshr_b32 s4, s2, 3
    s_mul_i32 s5, s4, 52
    s_lshr_b32 s5, s5, 8
    s_mul_i32 s6, s5, 5
    s_sub_u32 s4, s4, s6
    s_mul_i32 s3, s3, 6
    s_add_u32 s3, s3, s5
    s_lshr_b32 s5, s3, 4
    s_and_b32 s3, s3, 15
    v_lshlrev_b32 v{vL16}, 4, v2
    """)
    for n in range(2):
        p(f"""
        v_add_u32 v7, {4 * n}, v4
        v_lshlrev_b32 v8, 1, v7
        v_xor_b32 v8, v8, v3
        v_lshl_add_u32 v7, v1, 3, v7
        v_mul_u32_u24 v7, 1280, v7
        v_lshl_add_u32 v7, v8, 4, v7
        v_subrev_u32 v{vWd[n]}, {1024 * n}, v7
        """)
    p(f"""
    s_mul_i32 s6, s5, {2048 * 1280}
    s_lshl_b32 s7, s4, 8
    s_add_u32 s6, s6, s7
    s_sub_u32 s7, {2048 * 1280}, s7
    s_lshl_b32 s24, s3, 2
    s_add_u32 s24, s24, s{sWave}
    s_mul_i32 s24, s24, 393216
    s_lshl_b32 s25, s5, 17
    s_add_u32 s24, s24, s25
    s_add_u32 s24, s24, {WS_O - 2048}
    s_lshl_b32 s{sM}, s{sWave}, 12
    s_mov_b32 s{sKW}, 0
    s_mov_b32 s{sKO}, 0
    s_mov_b32 s{sCnt}, 8
    s_waitcnt lgkmcnt(0)
    """)
    srd_off(p, sW, 40, 's6', 's7')
    srd_off(p, sO, 46, 's24', 131072 + 2048)

    def dma(j):
        seq = [('s', f's_add_u32 m0, s{sM}, {(j % NS) * SLOT}')]
        for n in range(2):
            seq.append(('m', f'buffer_load_dwordx4 v{vWd[n]}, s[{sW}:{sW + 3}], s{sKW} offen offset:{1024 * n}{ntw} lds', ('st', j)))
        for n in range(2):
            seq.append(('m', f'buffer_load_dwordx4 v{vL16}, s[{sO}:{sO + 3}], s{sKO} offen offset:{2048 + 1024 * n} lds', ('st', j)))
        return seq

    def dma_pre(j):
        return [('s', f's_add_u32 s{sKW}, s{sKW}, {32 * 1280}' if not dbgW else f's_mov_b32 s{sKW}, {(j % 8) * 40960}'),
                ('s', f's_add_u32 s{sKO}, s{sKO}, 2048' if not dbgO else f's_mov_b32 s{sKO}, {(j % 8) * 2048}')] + dma(j)

    for j in range(NS - 1):
        emit_seq(p, dma(j) if j == 0 else dma_pre(j))
        if j < probar:
            p('s_barrier')
    p(f"""
    v_and_b32 v7, 1, v4
    v_lshl_add_u32 v8, v7, 2, v5
    v_lshrrev_b32 v9, 1, v4
    v_lshlrev_b32 v10, 13, v9
    v_lshl_add_u32 v10, v8, 8, v10
    v_lshl_add_u32 v10, v6, 3, v10
    s_and_b32 s6, s{sWave}, 1
    s_lshl_b32 s6, s6, 2
    s_lshr_b32 s7, s{sWave}, 1
    """)
    for t in range(4):
        p(f"""
        s_add_u32 s24, s6, {t}
        v_xor_b32 v11, s24, v8
        v_lshl_add_u32 v{vA[0][t]}, v11, 5, v10
        v_add_u32 v{vA[1][t]}, 65536, v{vA[0][t]}
        """)
    p(f"""
    s_lshl_b32 s24, s7, 13
    s_add_u32 s24, s24, 2048
    v_lshlrev_b32 v11, 10, v9
    v_lshl_add_u32 v11, v7, 9, v11
    v_lshl_add_u32 v11, v3, 4, v11
    v_add_u32 v{vB[0]}, s24, v11
    v_add_u32 v{vB[1]}, 65536, v{vB[0]}
    v_lshlrev_b32 v11, 1, v7
    v_add_u32 v11, v11, v9
    v_lshlrev_b32 v11, 8, v11
    v_lshl_add_u32 v{vSt}, v3, 4, v11
    s_lshl_b32 s24, s3, 3
    s_lshl_b32 s25, s7, 2
    s_add_u32 s24, s24, s25
    s_mul_i32 s24, s24, 20480
    s_mul_i32 s25, s5, 2621440
    s_add_u32 s24, s24, s25
    s_lshl_b32 s25, s4, 12
    s_add_u32 s24, s24, s25
    s_lshl_b32 s25, s6, 9
    s_add_u32 s24, s24, s25
    s_add_u32 s24, s24, {WS_PART}
    """)
    srd_off(p, sP, 46, 's24', 3 * 20480 + 2048)
    for r in range(64):
        p(f'v_mov_b32 v{r}, 0')

    A = lambda b, t: 64 + 32 * b + 4 * t
    B = lambda b, q: 80 + 32 * b + 4 * q

    def mfmas(s):
        b = s % 2
        return [f'{MF} v[{16 * t + 4 * q}:{16 * t + 4 * q + 3}], v[{A(b, t)}:{A(b, t) + 3}], v[{B(b, q)}:{B(b, q) + 3}], v[{16 * t + 4 * q}:{16 * t + 4 * q + 3}]'
                for t in range(4) for q in range(4)]

    def reads(s):
        b = s % 2
        so = (s % NS) * SLOT
        wd, so = so // 65536, so % 65536
        ra = lambda t: [f'ds_read_b64_tr_b16 v[{A(b, t) + 2 * x}:{A(b, t) + 2 * x + 1}], v{vA[wd][t]} offset:{so + 4096 * x}' for x in range(2)]
        rb = lambda q: [f'ds_read_b128 v[{B(b, q)}:{B(b, q) + 3}], v{vB[wd]} offset:{so + (q >> 1) * 4096 + (q & 1) * 256}']
        return ra(0) + rb(0) + rb(1) + rb(2) + rb(3) + ra(1) + ra(2) + ra(3)

    pipeline(p, 64, NS, mfmas, reads, dma_pre, [(0, 8), (8, 16)], other(16, dmag, 12), dmag, body=8, label='L_p4_loop', cnt=sCnt, prof=prof)
    if prof:
        p.add(prof_stamp(1))
        p.add(prof_stamp(2))
    p('s_waitcnt lgkmcnt(0)')
    for q in range(4):
        p(f's_mov_b32 s24, {q * 20480}')
        for t in range(2):
            d = 64 + 8 * q + 4 * t
            for h in range(2):
                a = 16 * (2 * t + h) + 4 * q
                p(f'v_cvt_pk_bf16_f32 v{d + 2 * h}, v{a}, v{a + 1}')
                p(f'v_cvt_pk_bf16_f32 v{d + 2 * h + 1}, v{a + 2}, v{a + 3}')
        for t in range(2):
            d = 64 + 8 * q + 4 * t
            p(f'v_permlane16_swap_b32 v{d}, v{d + 2}')
            p(f'v_permlane16_swap_b32 v{d + 1}, v{d + 3}')
        for t in range(2):
            d = 64 + 8 * q + 4 * t
            p(f'buffer_store_dwordx4 v[{d}:{d + 3}], v{vSt}, s[{sP}:{sP + 3}], s24 offen offset:{1024 * t}{st_flag}')
    p('s_waitcnt vmcnt(8)')
    if prof:
        prof_end(p, 46, 0x8100000)
    p('L_p4_end:')
    p('s_endpgm')
    st = p.resolve_waits()
    nn = p.fix_hazards()
    fold_loop(p, 'L_p4_loop')
    if nomfma:
        p.items = [x for x in p.items if x.kind != 'mfma']
    print('p4 waits', st, 'nops', nn)
    return kernel_text('p4_kernel', p, 144, 0, 96), ('p4_kernel', 240, 256, NS * SLOT)


def gen_p6(prof=False, st_flag=' sc1', ntw='', NS=8, probar=0, dmag=(4, 8, 12, 16, 20)):
    p = Prog()
    SLOT = 20480
    sW, sH, sA = 8, 12, 16
    sM0, sM1, sKW, sKH = 20, 21, 22, 23
    NW = 3
    vA = [[176 + 2 * wdw + e for e in range(2)] for wdw in range(NW)]
    vB = [182, 183, 184]
    vWd = [185, 186, 187]
    vHd = [188, 189]
    vSt = 190
    p(f"""
    s_cmp_ge_u32 s2, 256
    s_cbranch_scc1 L_p6_end
    s_load_dwordx4 s[40:43], s[0:1], 48
    s_load_dwordx2 s[46:47], s[0:1], 104
    """)
    if prof:
        prof_begin(p)
    lane_setup(p)
    p(f"""
    s_and_b32 s3, s2, 1
    s_lshl_b32 s3, s3, 3
    s_lshr_b32 s5, s2, 3
    s_and_b32 s6, s5, 7
    s_add_u32 s3, s3, s6
    s_and_b32 s4, s2, 6
    s_lshl_b32 s4, s4, 1
    s_lshr_b32 s5, s5, 3
    s_add_u32 s4, s4, s5
    v_and_b32 v7, 1, v1
    v_mul_u32_u24 v7, 192, v7
    v_add_u32 v7, v7, v2
    """)
    for n in range(3):
        p(f"""
        v_add_u32 v8, {64 * n}, v7
        v_mul_u32_u24 v9, 5462, v8
        v_lshrrev_b32 v9, 16, v9
        v_mul_u32_u24 v10, 12, v9
        v_sub_u32 v10, v8, v10
        v_lshrrev_b32 v11, 2, v9
        v_and_b32 v11, 2, v11
        v_xor_b32 v10, v10, v11
        v_mul_u32_u24 v9, 3072, v9
        v_lshl_add_u32 v9, v10, 4, v9
        v_subrev_u32 v{vWd[n]}, {1024 * n}, v9
        """)
    p(f"""
    v_lshlrev_b32 v{vHd[0]}, 4, v2
    v_add_u32 v{vHd[1]}, {20480 - 1024}, v{vHd[0]}
    s_mul_i32 s6, s4, 192
    s_sub_u32 s7, {640 * 3072}, s6
    s_lshl_b32 s24, s3, 3
    s_lshl_b32 s25, s{sWave}, 1
    s_add_u32 s24, s24, s25
    s_mul_i32 s24, s24, 20480
    s_add_u32 s24, s24, {WS_H2}
    s_mul_i32 s{sM0}, s{sWave}, 3072
    s_lshl_b32 s{sM1}, s{sWave}, 11
    s_add_u32 s{sM1}, s{sM1}, 12288
    s_cmp_ge_u32 s{sWave}, 2
    s_waitcnt lgkmcnt(0)
    s_cselect_b32 s40, s42, s40
    s_cselect_b32 s41, s43, s41
    """)
    srd_off(p, sW, 40, 's6', 's7')
    srd_off(p, sH, 46, 's24', 40960)

    def dma(j):
        if j >= 20:
            return []
        seq = [('s', f's_add_u32 m0, s{sM0}, {(j % NS) * SLOT}'), ('s', f's_mov_b32 s{sKW}, {j * 32 * 3072}'), ('s', f's_mov_b32 s{sKH}, {j * 1024}')]
        for n in range(3):
            seq.append(('m', f'buffer_load_dwordx4 v{vWd[n]}, s[{sW}:{sW + 3}], s{sKW} offen offset:{1024 * n}{ntw} lds', ('st', j)))
        seq.append(('s', f's_add_u32 m0, s{sM1}, {(j % NS) * SLOT}'))
        for n in range(2):
            seq.append(('m', f'buffer_load_dwordx4 v{vHd[n]}, s[{sH}:{sH + 3}], s{sKH} offen offset:{1024 * n} lds', ('st', j)))
        return seq

    for j in range(NS - 1):
        emit_seq(p, dma(j))
        if j < probar:
            p('s_barrier')
    p(f"""
    v_lshl_add_u32 v7, v4, 3, v5
    v_mul_u32_u24 v7, 192, v7
    v_lshl_add_u32 v7, v6, 3, v7
    v_and_b32 v8, 1, v4
    s_and_b32 s6, s{sWave}, 1
    s_lshr_b32 s7, s{sWave}, 1
    s_mul_i32 s24, s6, 3
    v_xor_b32 v9, s24, v8
    v_lshl_add_u32 v{vA[0][0]}, v9, 5, v7
    s_add_u32 s24, s24, 1
    v_xor_b32 v9, s24, v8
    v_lshl_add_u32 v{vA[0][1]}, v9, 5, v7
    s_lshl_b32 s24, s7, 12
    s_add_u32 s24, s24, 12288
    v_add_u32 v{vB[0]}, s24, v{vHd[0]}
    """)
    for wdw in range(1, NW):
        for e in range(2):
            p(f'v_add_u32 v{vA[wdw][e]}, {wdw * 3 * SLOT}, v{vA[0][e]}')
        p(f'v_add_u32 v{vB[wdw]}, {wdw * 3 * SLOT}, v{vB[0]}')
    p(f"""
    v_lshrrev_b32 v9, 1, v4
    v_lshlrev_b32 v9, 8, v9
    v_lshl_add_u32 v9, v3, 4, v9
    v_mul_u32_u24 v8, 49152, v8
    v_add_u32 v{vSt}, v8, v9
    s_lshl_b32 s24, s3, 3
    s_lshl_b32 s25, s7, 2
    s_add_u32 s24, s24, s25
    s_mul_i32 s24, s24, 49152
    s_mul_i32 s25, s4, 3072
    s_add_u32 s24, s24, s25
    s_mul_i32 s25, s6, 1536
    s_add_u32 s24, s24, s25
    s_add_u32 s24, s24, {WS_ACT}
    """)
    srd_off(p, sA, 46, 's24', 3 * 49152 + 1536)

    A = lambda b, t: 96 + 40 * b + 4 * t
    B = lambda b, q: 120 + 40 * b + 4 * q
    def mfmas(s):
        b = s % 2
        out = []
        for t in range(6):
            for q in range(4):
                d = 16 * t + 4 * q
                out.append(f"{MF} v[{d}:{d + 3}], v[{A(b, t)}:{A(b, t) + 3}], v[{B(b, q)}:{B(b, q) + 3}], {'0' if s == 0 else f'v[{d}:{d + 3}]'}")
        return out

    def reads(s):
        b = s % 2
        sl = s % NS
        wd, so = sl // 3, (sl % 3) * SLOT
        ra = lambda t: [f'ds_read_b64_tr_b16 v[{A(b, t) + 2 * x}:{A(b, t) + 2 * x + 1}], v{vA[wd][(t // 2) % 2]} offset:{so + (t % 2) * 6144 + (t // 4) * 64 + 768 * x}' for x in range(2)]
        rb = lambda q: [f'ds_read_b128 v[{B(b, q)}:{B(b, q) + 3}], v{vB[wd]} offset:{so + q * 1024}']
        return ra(0) + rb(0) + rb(1) + rb(2) + rb(3) + ra(1) + ra(2) + ra(3) + ra(4) + ra(5)

    pipeline(p, 20, NS, mfmas, reads, dma, [(0, 8), (8, 24)], other(24, dmag, 16), dmag, prof=prof)
    if prof:
        p.add(prof_stamp(1))
    c1 = -2 * math.log2(math.e) * math.sqrt(2 / math.pi)
    c2 = c1 * 0.044715
    p(f'v_mov_b32 v96, {f2h(c1)}')
    p(f's_mov_b32 s24, {f2h(c2)}')
    p(f's_mov_b32 s25, {2 * 49152}')
    T = 100
    for i in range(3):
        for pr in range(2):
            regs = [(32 * i + 8 * pr + k, 32 * i + 16 + 8 * pr + k) for k in range(8)]
            for k, (x, u) in enumerate(regs):
                p(f'v_mul_f32 v{T + k}, v{x}, v{x}')
            for k, (x, u) in enumerate(regs):
                p(f'v_fma_f32 v{T + k}, v{T + k}, s24, v96')
            for k, (x, u) in enumerate(regs):
                p(f'v_mul_f32 v{T + k}, v{T + k}, v{x}')
            for k, (x, u) in enumerate(regs):
                p(f'v_exp_f32 v{T + k}, v{T + k}')
                p(f'v_mul_f32 v{x}, v{x}, v{u}')
            for k, (x, u) in enumerate(regs):
                p(f'v_add_f32 v{T + k}, 1.0, v{T + k}')
            for k, (x, u) in enumerate(regs):
                p(f'v_rcp_f32 v{T + k}, v{T + k}')
            for k, (x, u) in enumerate(regs):
                p(f'v_mul_f32 v{x}, v{x}, v{T + k}')
            d = 112 + 4 * (2 * i + pr)
            x0 = regs[0][0]
            for k in range(4):
                p(f'v_cvt_pk_bf16_f32 v{d + k}, v{x0 + 2 * k}, v{x0 + 2 * k + 1}')
            p(f'v_permlane16_swap_b32 v{d}, v{d + 2}')
            p(f'v_permlane16_swap_b32 v{d + 1}, v{d + 3}')
            p(f"buffer_store_dwordx4 v[{d}:{d + 3}], v{vSt}, s[{sA}:{sA + 3}], {'s25' if pr else '0'} offen offset:{512 * i}{st_flag}")
    if prof:
        p.add(prof_stamp(2))
        prof_end(p, 46, 0x8200000)
    p('L_p6_end:')
    p('s_endpgm')
    st = p.resolve_waits()
    nn = p.fix_hazards()
    print('p6 waits', st, 'nops', nn)
    return kernel_text('p6_kernel', p, 192, 0, 96), ('p6_kernel', 256, 256, NS * SLOT)


def gen_p7(prof=False, st_flag='', ntw='', NS=8, probar=0, dmag=(4, 5, 7, 9, 11), rdg=(0, 0, 1, 1, 2, 2, 3, 3, 4, 5, 6, 6, 7, 8)):
    p = Prog()
    SLOT = 20480
    sW, sA, sX, sG, sOut = 8, 12, 16, 24, 28
    sM0, sM1, sKW, sKA = 20, 21, 22, 23
    NW = 3
    vA = [[112 + 2 * wdw + e for e in range(2)] for wdw in range(NW)]
    vB = [118, 119, 120]
    vWd = [121, 122]
    vAd = [123, 124, 125]
    vSt = 126
    vX = 128
    vG = 140
    p(f"""
    s_cmp_ge_u32 s2, 224
    s_cbranch_scc1 L_p7_end
    s_load_dwordx2 s[40:41], s[0:1], 64
    s_load_dwordx2 s[44:45], s[0:1], 88
    s_load_dwordx2 s[46:47], s[0:1], 104
    """)
    if prof:
        prof_begin(p)
    lane_setup(p)
    p(f"""
    s_lshr_b32 s5, s2, 3
    s_lshr_b32 s3, s2, 1
    s_and_b32 s3, s3, 3
    s_mul_i32 s3, s3, 28
    s_add_u32 s5, s5, s3
    s_cmp_ge_u32 s5, 110
    s_cbranch_scc1 L_p7_end
    s_mul_i32 s3, s5, 205
    s_lshr_b32 s3, s3, 10
    s_mul_i32 s6, s3, 5
    s_sub_u32 s4, s5, s6
    s_and_b32 s6, s2, 1
    s_mul_i32 s6, s6, 5
    s_add_u32 s4, s4, s6
    """)
    for n in range(2):
        p(f"""
        v_lshrrev_b32 v7, 3, v2
        v_and_b32 v8, 2, v7
        v_or_b32 v8, {4 * n}, v8
        v_and_b32 v9, 7, v2
        v_xor_b32 v8, v8, v9
        v_lshl_add_u32 v7, v1, 4, v7
        v_add_u32 v7, {8 * n}, v7
        v_mul_u32_u24 v7, 1280, v7
        v_lshl_add_u32 v7, v8, 4, v7
        v_subrev_u32 v{vWd[n]}, {1024 * n}, v7
        """)
    p(f's_mul_i32 s6, s{sWave}, 3')
    for n in range(3):
        p(f"""
        s_add_u32 s7, s6, {n}
        s_lshr_b32 s32, s7, 1
        s_mul_i32 s32, s32, 49152
        s_and_b32 s7, s7, 1
        s_lshl_b32 s7, s7, 10
        s_add_u32 s32, s32, s7
        s_sub_u32 s32, s32, {1024 * n}
        v_lshl_add_u32 v{vAd[n]}, v2, 4, s32
        """)
    p(f"""
    s_lshl_b32 s6, s4, 7
    s_sub_u32 s7, {1536 * 1280}, s6
    s_mul_i32 s32, s3, {6 * 49152}
    s_sub_u32 s33, {128 * 49152}, s32
    s_add_u32 s32, s32, {WS_ACT}
    s_lshl_b32 s{sM0}, s{sWave}, 11
    s_mul_i32 s{sM1}, s{sWave}, 3072
    s_add_u32 s{sM1}, s{sM1}, 8192
    s_waitcnt lgkmcnt(0)
    """)
    srd_off(p, sW, 40, 's6', 's7')
    srd_off(p, sA, 46, 's32', 's33')

    def dma(j):
        if j >= 24:
            return []
        seq = [('s', f's_add_u32 m0, s{sM0}, {(j % NS) * SLOT}'), ('s', f's_mov_b32 s{sKW}, {j * 64 * 1280}'), ('s', f's_mov_b32 s{sKA}, {j * 2048}')]
        for n in range(2):
            seq.append(('m', f'buffer_load_dwordx4 v{vWd[n]}, s[{sW}:{sW + 3}], s{sKW} offen offset:{1024 * n}{ntw} lds', ('st', j)))
        seq.append(('s', f's_add_u32 m0, s{sM1}, {(j % NS) * SLOT}'))
        for n in range(3):
            seq.append(('m', f'buffer_load_dwordx4 v{vAd[n]}, s[{sA}:{sA + 3}], s{sKA} offen offset:{1024 * n} lds', ('st', j)))
        return seq

    for j in range(NS - 1):
        emit_seq(p, dma(j))
        if j < probar:
            p('s_barrier')
    p(f"""
    v_lshl_add_u32 v7, v4, 3, v5
    v_lshlrev_b32 v7, 7, v7
    v_lshl_add_u32 v7, v6, 3, v7
    v_and_b32 v8, 1, v4
    v_lshrrev_b32 v9, 1, v5
    v_lshl_add_u32 v9, v8, 1, v9
    s_and_b32 s6, s{sWave}, 1
    s_lshr_b32 s7, s{sWave}, 1
    s_lshl_b32 s32, s6, 1
    v_xor_b32 v10, s32, v9
    v_lshl_add_u32 v{vA[0][0]}, v10, 5, v7
    v_xor_b32 v10, 1, v10
    v_lshl_add_u32 v{vA[0][1]}, v10, 5, v7
    s_mul_i32 s32, s7, 6144
    s_add_u32 s32, s32, 8192
    v_lshl_add_u32 v{vB[0]}, v2, 4, s32
    """)
    for wdw in range(1, NW):
        for e in range(2):
            p(f'v_add_u32 v{vA[wdw][e]}, {wdw * 3 * SLOT}, v{vA[0][e]}')
        p(f'v_add_u32 v{vB[wdw]}, {wdw * 3 * SLOT}, v{vB[0]}')
    p(f"""
    v_lshrrev_b32 v9, 1, v4
    v_lshl_add_u32 v9, v8, 1, v9
    v_lshlrev_b32 v10, 8, v9
    v_lshl_add_u32 v10, v3, 4, v10
    v_lshlrev_b32 v11, 5, v9
    v_mul_u32_u24 v12, 1280, v3
    v_lshl_add_u32 v{vSt}, v9, 4, v12
    s_mul_i32 s32, s3, 6
    s_mul_i32 s33, s7, 3
    s_add_u32 s32, s32, s33
    s_mul_i32 s32, s32, 20480
    s_lshl_b32 s33, s4, 1
    s_add_u32 s33, s33, s6
    s_lshl_b32 s34, s33, 10
    s_add_u32 s34, s34, s32
    s_lshl_b32 s35, s33, 6
    s_add_u32 s35, s35, s32
    s_lshl_b32 s33, s33, 7
    s_add_u32 s33, s33, {5 * 2560}
    """)
    srd_off(p, sX, 46, WS_X1, 2621440)
    srd(p, sG, 46, 47, 15360)
    srd(p, sOut, 44, 45, 2621440)
    for q in range(3):
        p(f'buffer_load_dwordx4 v[{vX + 4 * q}:{vX + 4 * q + 3}], v10, s[{sX}:{sX + 3}], s34 offen')
        if q < 2:
            p(f's_add_u32 s34, s34, 20480')
    p(f'buffer_load_dwordx4 v[{vG}:{vG + 3}], v11, s[{sG}:{sG + 3}], s33 offen')
    p(f'buffer_load_dwordx4 v[{vG + 4}:{vG + 7}], v11, s[{sG}:{sG + 3}], s33 offen offset:16')

    A = lambda b, u, t: 24 + 40 * b + 20 * u + 4 * t
    B = lambda b, u, q: 32 + 40 * b + 20 * u + 4 * q

    def mfmas(s):
        b = s % 2
        out = []
        for u in range(2):
            for t in range(2):
                for q in range(3):
                    d = 8 * q + 4 * t
                    out.append(f"{MF} v[{d}:{d + 3}], v[{A(b, u, t)}:{A(b, u, t) + 3}], v[{B(b, u, q)}:{B(b, u, q) + 3}], {'0' if s == 0 and u == 0 else f'v[{d}:{d + 3}]'}")
        return out

    def reads(s):
        b = s % 2
        sl = s % NS
        wd, so = sl // 3, (sl % 3) * SLOT
        out = []
        for u in range(2):
            ra = lambda t: [f'ds_read_b64_tr_b16 v[{A(b, u, t) + 2 * x}:{A(b, u, t) + 2 * x + 1}], v{vA[wd][t]} offset:{so + 4096 * u + 512 * x}' for x in range(2)]
            rb = lambda q: [f'ds_read_b128 v[{B(b, u, q)}:{B(b, u, q) + 3}], v{vB[wd]} offset:{so + q * 2048 + u * 1024}']
            out += ra(0) + rb(0) + rb(1) + rb(2) + ra(1)
        return out

    pipeline(p, 24, NS, mfmas, reads, dma, [(0, 4), (4, 12)], rdg, dmag, prof=prof)
    if prof:
        p.add(prof_stamp(1))
    for q in range(3):
        for k in range(4):
            p(f'v_permlane16_swap_b32 v{8 * q + k}, v{8 * q + 4 + k}')
        for d in range(4):
            p(f'v_lshlrev_b32 v{24 + 2 * d}, 16, v{vX + 4 * q + d}')
            p(f'v_and_b32 v{25 + 2 * d}, 0xffff0000, v{vX + 4 * q + d}')
        for k in range(8):
            p(f'v_fmac_f32 v{24 + k}, v{vG + k}, v{8 * q + k}')
        for d in range(4):
            p(f'v_cvt_pk_bf16_f32 v{8 * q + d}, v{24 + 2 * d}, v{25 + 2 * d}')
        p(f'buffer_store_dwordx4 v[{8 * q}:{8 * q + 3}], v{vSt}, s[{sOut}:{sOut + 3}], s35 offen{st_flag}')
        if q < 2:
            p(f's_add_u32 s35, s35, 20480')
    if prof:
        p.add(prof_stamp(2))
        prof_end(p, 46, 0x8300000)
    p('L_p7_end:')
    p('s_endpgm')
    st = p.resolve_waits()
    nn = p.fix_hazards()
    print('p7 waits', st, 'nops', nn)
    return kernel_text('p7_kernel', p, 148, 0, 96), ('p7_kernel', 224, 256, NS * SLOT)
```

```python
from asmgen import *
from layout import *


def srd(p, s, base_lo, base_hi, size):
    if base_lo != s:
        p(f's_mov_b32 s{s}, s{base_lo}')
        p(f's_mov_b32 s{s + 1}, s{base_hi}')
    p(f's_mov_b32 s{s + 2}, {size}')
    p(f's_mov_b32 s{s + 3}, 0x20000')


def srd_off(p, s, ptr, off, size):
    p(f's_add_u32 s{s}, s{ptr}, {off}')
    p(f's_addc_u32 s{s + 1}, s{ptr + 1}, 0')
    p(f's_mov_b32 s{s + 2}, {size}')
    p(f's_mov_b32 s{s + 3}, 0x20000')


def sprof_begin(p):
    p('s_memtime s[60:61]')
    p('s_memrealtime s[72:73]')
    p('s_load_dwordx2 s[46:47], s[0:1], 104')


def sprof_mid(p, k):
    p(f's_memtime s[{62 + 2 * k}:{63 + 2 * k}]')
    p('s_waitcnt lgkmcnt(0)')


def sprof_end(p, off):
    p(f"""
    s_mov_b64 exec, -1
    s_memtime s[68:69]
    s_waitcnt vmcnt(0) lgkmcnt(0)
    s_memtime s[70:71]
    s_memrealtime s[74:75]
    v_lshrrev_b32 v1, 6, v0
    s_nop 1
    v_readfirstlane_b32 s36, v1
    s_waitcnt lgkmcnt(0)
    s_min_u32 s36, s36, 3
    s_lshl_b32 s6, s2, 2
    s_add_u32 s6, s6, s36
    s_lshl_b32 s6, s6, 5
    s_add_u32 s6, s6, {off}
    """)
    srd_off(p, 52, 46, 's6', 32)
    for k in range(5):
        p(f's_sub_u32 s{62 + 2 * k}, s{62 + 2 * k}, s60')
        p(f'v_mov_b32 v{k}, s{62 + 2 * k}')
    p('v_mov_b32 v8, 0')
    p('v_mov_b32 v5, s72')
    p('v_mov_b32 v6, s74')
    p('buffer_store_dwordx4 v[0:3], v8, s[52:55], 0 offen')
    p('buffer_store_dwordx4 v[4:7], v8, s[52:55], 0 offen offset:16')


def code_prefetch(p, lab0, lab1, sreg, vtmp, vdst, soff=None):
    u = f'L_pc_{lab0}_{sreg}_{len(p.items)}'
    p(f"""
    s_getpc_b64 s[{sreg}:{sreg + 1}]
    {u}:
    s_add_u32 s{sreg}, s{sreg}, {lab0}-{u}
    s_addc_u32 s{sreg + 1}, s{sreg + 1}, 0
    s_mov_b32 s{sreg + 2}, {lab1}-{lab0}
    s_mov_b32 s{sreg + 3}, 0x20000
    v_lshlrev_b32 v{vtmp}, 7, v0
    """)
    p(f"buffer_load_dword v{vdst}, v{vtmp}, s[{sreg}:{sreg + 3}], {soff or 0} offen", 'pf')


def gen_mod(pf_code=True, prof=False):
    p = Prog()
    if prof:
        sprof_begin(p)
    if pf_code:
        p('s_lshr_b32 s3, s2, 3')
        p('s_lshl_b32 s3, s3, 15')
        code_prefetch(p, 'ln1_kernel', 'L_code_end', 28, 54, 55, 's3')
    p(f"""
    s_and_b32 s3, s2, 7
    s_lshr_b32 s20, s2, 5
    s_lshl_b32 s20, s20, 3
    s_add_u32 s20, s20, s3
    s_cmp_ge_u32 s20, 60
    s_cbranch_scc1 L_mod_end
    s_load_dwordx4 s[4:7], s[0:1], 72
    s_load_dwordx2 s[16:17], s[0:1], 104
    s_lshr_b32 s21, s2, 3
    s_and_b32 s21, s21, 3
    s_lshl_b32 s20, s20, 6
    s_lshl_b32 s21, s21, 4
    s_add_u32 s20, s20, s21
    s_lshl_b32 s22, s20, 1
    v_lshrrev_b32 v1, 1, v0
    v_and_b32 v2, 1, v0
    v_mul_u32_u24 v3, 7680, v1
    v_lshl_add_u32 v3, v2, 4, v3
    v_lshlrev_b32 v4, 1, v1
    s_waitcnt lgkmcnt(0)
    """)
    if prof:
        sprof_mid(p, 0)
    srd(p, 8, 4, 5, 1280)
    srd(p, 12, 6, 7, 640 * 7680)
    srd(p, 16, 16, 17, WS_FLAG + (4096 << FSH))
    p(f"""
    s_lshl_b32 s23, s2, {8 + FSH}
    s_add_u32 s23, s23, {WS_FLAG}
    v_lshlrev_b32 v5, {FSH}, v0
    v_mov_b32 v6, 0
    buffer_store_dword v6, v5, s[16:19], s23 offen
    """)
    for it in range(5):
        p(f's_add_u32 s23, s22, {it * 128 * 7680}')
        p(f'buffer_load_dwordx4 v[{16 + 4 * it}:{19 + 4 * it}], v3, s[12:15], s23 offen nt')
    for it in range(5):
        p(f'buffer_load_ushort v{8 + it}, v4, s[8:11], 0 offen offset:{256 * it}')
    for it in range(5):
        p(f'v_lshlrev_b32 v{8 + it}, 16, v{8 + it}')
        p(f'v_mul_f32 v{36 + it}, 0xbfb8aa3b, v{8 + it}')
    for it in range(5):
        p(f'v_exp_f32 v{36 + it}, v{36 + it}')
    for it in range(5):
        p(f'v_add_f32 v{36 + it}, 1.0, v{36 + it}')
    for it in range(5):
        p(f'v_rcp_f32 v{36 + it}, v{36 + it}')
    for it in range(5):
        p(f'v_mul_f32 v{8 + it}, v{8 + it}, v{36 + it}')
    for it in range(5):
        for d in range(4):
            p(f'v_lshlrev_b32 v52, 16, v{16 + 4 * it + d}')
            p(f'v_and_b32 v53, 0xffff0000, v{16 + 4 * it + d}')
            if it == 0:
                p(f'v_mul_f32 v{44 + 2 * d}, v52, v{8 + it}')
                p(f'v_mul_f32 v{45 + 2 * d}, v53, v{8 + it}')
            else:
                p(f'v_fmac_f32 v{44 + 2 * d}, v52, v{8 + it}')
                p(f'v_fmac_f32 v{45 + 2 * d}, v53, v{8 + it}')
    if prof:
        sprof_mid(p, 1)
        sprof_mid(p, 2)
    for rot in (2, 4, 8):
        for e in range(8):
            p(f'v_add_f32_dpp v{44 + e}, v{44 + e}, v{44 + e} row_ror:{rot} row_mask:0xf bank_mask:0xf')
    p("""
    v_lshrrev_b32 v5, 4, v0
    v_lshlrev_b32 v5, 6, v5
    v_lshl_add_u32 v5, v2, 5, v5
    v_and_b32 v6, 15, v0
    v_cmp_gt_u32 vcc, 2, v6
    s_and_saveexec_b64 s[24:25], vcc
    ds_write_b128 v5, v[44:47]
    ds_write_b128 v5, v[48:51] offset:16
    s_mov_b64 exec, s[24:25]
    s_waitcnt lgkmcnt(0)
    s_barrier
    v_cmp_gt_u32 vcc, 16, v0
    s_and_saveexec_b64 s[24:25], vcc
    s_cbranch_execz L_mod_end
    v_lshlrev_b32 v5, 2, v0
    """)
    for i in range(16):
        p(f'ds_read_b32 v{16 + i}, v5 offset:{64 * i}')
    for st in (8, 4, 2, 1):
        for i in range(st):
            p(f'v_add_f32 v{16 + i}, v{16 + i}, v{16 + i + st}')
    p("""
    s_lshl_b32 s22, s20, 2
    buffer_store_dword v16, v5, s[16:19], s22 offen
    """)
    if prof:
        sprof_end(p, 0x8400000)
    p('L_mod_end:')
    p('s_endpgm')
    p.resolve_waits()
    p.fix_hazards()
    return kernel_text('mod_kernel', p, 56, 0, 80), ('mod_kernel', 256, 256, 1024)


def row_reduce(p, v, t, vaddr_w, vaddr_r, off, r0):
    p(f"""
    v_add_f32_dpp v{v}, v{v}, v{v} row_ror:8 row_mask:0xf bank_mask:0xf
    v_mov_b32 v{t}, v{v}
    v_permlane16_swap_b32 v{v}, v{t}
    v_add_f32 v{v}, v{v}, v{t}
    v_mov_b32 v{t}, v{v}
    v_permlane32_swap_b32 v{v}, v{t}
    v_add_f32 v{v}, v{v}, v{t}
    ds_write_b32 v{vaddr_w}, v{v} offset:{off}
    s_waitcnt lgkmcnt(0)
    s_barrier
    ds_read_b128 v[{r0}:{r0 + 3}], v{vaddr_r} offset:{off}
    ds_read_b128 v[{r0 + 4}:{r0 + 7}], v{vaddr_r} offset:{off + 16}
    ds_read_b64 v[{r0 + 8}:{r0 + 9}], v{vaddr_r} offset:{off + 32}
    """)
    for i in range(5):
        p(f'v_add_f32 v{r0 + i}, v{r0 + i}, v{r0 + 5 + i}')
    p(f"""
    v_add_f32 v{r0}, v{r0}, v{r0 + 1}
    v_add_f32 v{r0 + 2}, v{r0 + 2}, v{r0 + 3}
    v_add_f32 v{r0}, v{r0}, v{r0 + 4}
    v_add_f32 v{v}, v{r0}, v{r0 + 2}
    """)


def ln_core(p, X, G, B, scale):
    p(f"""
    v_add_f32 v56, v{X}, v{X + 1}
    v_add_f32 v57, v{X + 2}, v{X + 3}
    v_add_f32 v58, v{X + 4}, v{X + 5}
    v_add_f32 v59, v{X + 6}, v{X + 7}
    v_add_f32 v56, v56, v57
    v_add_f32 v58, v58, v59
    v_add_f32 v56, v56, v58
    """)
    row_reduce(p, 56, 57, 6, 7, 0, 60)
    p(f'v_mul_f32 v56, {f2h(-1.0 / 640)}, v56')
    for e in range(8):
        p(f'v_add_f32 v{X + e}, v{X + e}, v56')
    p(f'v_mul_f32 v56, v{X}, v{X}')
    p(f'v_mul_f32 v57, v{X + 1}, v{X + 1}')
    for e in range(2, 8):
        p(f'v_fmac_f32 v{56 + e % 2}, v{X + e}, v{X + e}')
    p('v_add_f32 v56, v56, v57')
    row_reduce(p, 56, 57, 6, 7, 512, 60)
    p(f'v_mov_b32 v57, {f2h(1e-5)}')
    p(f'v_fmac_f32 v57, {f2h(1.0 / 640)}, v56')
    p('v_rsq_f32 v57, v57')
    if scale != 1.0:
        for e in range(8):
            p(f'v_mul_f32 v{B + e}, {f2h(scale)}, v{B + e}')
        p(f'v_mul_f32 v57, {f2h(scale)}, v57')
    for e in range(8):
        p(f'v_add_f32 v{G + e}, 1.0, v{G + e}')
    for e in range(8):
        p(f'v_mul_f32 v{X + e}, v{X + e}, v57')
    for e in range(8):
        p(f'v_fmac_f32 v{B + e}, v{X + e}, v{G + e}')
    for d in range(4):
        p(f'v_cvt_pk_bf16_f32 v{X + d}, v{B + 2 * d}, v{B + 2 * d + 1}')


def ln_common(p, f16=False):
    sh = 1 if f16 else 2
    p(f"""
    v_and_b32 v1, 7, v0
    v_lshrrev_b32 v2, 3, v0
    s_and_b32 s20, s2, {(1 << sh) - 1}
    s_lshl_b32 s20, s20, 7
    v_lshlrev_b32 v5, {7 + sh}, v2
    v_lshl_add_u32 v5, v1, 4, v5
    v_add_u32 v5, s20, v5
    s_lshr_b32 s21, s2, {sh}
    s_mul_i32 s21, s21, {10240 << sh}
    v_lshrrev_b32 v8, 6, v0
    v_lshlrev_b32 v7, 6, v1
    v_lshl_add_u32 v6, v8, 2, v7
    s_mul_i32 s22, s2, 10240
    """)


def gen_ln1(prof=False):
    p = Prog()
    p("""
    s_cmp_ge_u32 s2, 256
    s_cbranch_scc1 L_ln1_end
    s_load_dwordx2 s[4:5], s[0:1], 0
    s_load_dwordx2 s[6:7], s[0:1], 104
    """)
    if prof:
        sprof_begin(p)
    ln_common(p)
    p("""
    v_mul_u32_u24 v3, 1280, v1
    v_lshl_add_u32 v3, v2, 4, v3
    v_lshlrev_b32 v4, 5, v2
    s_waitcnt lgkmcnt(0)
    """)
    if prof:
        sprof_mid(p, 0)
    srd(p, 8, 4, 5, 2621440)
    srd(p, 12, 6, 7, 15360)
    srd_off(p, 16, 6, WS_H, 2621440)
    p("""
    buffer_load_dwordx4 v[12:15], v3, s[8:11], s22 offen nt
    buffer_load_dwordx4 v[24:27], v4, s[12:15], 0 offen
    buffer_load_dwordx4 v[28:31], v4, s[12:15], 0 offen offset:16
    buffer_load_dwordx4 v[32:35], v4, s[12:15], 0 offen offset:2560
    buffer_load_dwordx4 v[36:39], v4, s[12:15], 0 offen offset:2576
    """)
    for d in range(4):
        p(f'v_lshlrev_b32 v{16 + 2 * d}, 16, v{12 + d}')
        p(f'v_and_b32 v{17 + 2 * d}, 0xffff0000, v{12 + d}')
    if prof:
        sprof_mid(p, 1)
    ln_core(p, 16, 32, 24, QSCALE)
    if prof:
        sprof_mid(p, 2)
    p("""
    buffer_store_dwordx4 v[16:19], v5, s[16:19], s21 offen
    """)
    if prof:
        sprof_end(p, 139460608)
    p('L_ln1_end:')
    p('s_endpgm')
    p.resolve_waits()
    p.fix_hazards()
    return kernel_text('ln1_kernel', p, 72, 0, 80), ('ln1_kernel', 256, 640, 1024)


def gen_ln2(prof=False):
    p = Prog()
    p("""
    s_cmp_ge_u32 s2, 256
    s_cbranch_scc1 L_ln2_end
    s_load_dwordx2 s[4:5], s[0:1], 0
    s_load_dwordx2 s[6:7], s[0:1], 104
    """)
    if prof:
        sprof_begin(p)
    ln_common(p, True)
    p("""
    v_mul_u32_u24 v3, 1280, v1
    v_lshl_add_u32 v3, v2, 4, v3
    v_lshlrev_b32 v4, 5, v2
    s_waitcnt lgkmcnt(0)
    """)
    if prof:
        sprof_mid(p, 0)
    srd(p, 8, 4, 5, 2621440)
    srd(p, 12, 6, 7, 15360)
    srd_off(p, 16, 6, WS_PART, NSPLIT * 2621440)
    srd_off(p, 24, 6, WS_H2, 2621440)
    srd_off(p, 28, 6, WS_X1, 2621440)
    for s in range(NSPLIT):
        p(f's_add_u32 s23, s21, {s * 2621440}')
        p(f'buffer_load_dwordx4 v[{72 + 4 * s}:{75 + 4 * s}], v5, s[16:19], s23 offen')
    p(f"""
    buffer_load_dwordx4 v[12:15], v3, s[8:11], s22 offen
    s_mov_b32 s23, {2 * 2560}
    buffer_load_dwordx4 v[40:43], v4, s[12:15], s23 offen
    buffer_load_dwordx4 v[44:47], v4, s[12:15], s23 offen offset:16
    buffer_load_dwordx4 v[24:27], v4, s[12:15], s23 offen offset:2560
    buffer_load_dwordx4 v[28:31], v4, s[12:15], s23 offen offset:2576
    s_mov_b32 s23, {4 * 2560}
    buffer_load_dwordx4 v[32:35], v4, s[12:15], s23 offen
    buffer_load_dwordx4 v[36:39], v4, s[12:15], s23 offen offset:16
    """)
    for s in range(NSPLIT):
        for d in range(4):
            if s == 0:
                p(f'v_lshlrev_b32 v{48 + 2 * d}, 16, v{72 + d}')
                p(f'v_and_b32 v{49 + 2 * d}, 0xffff0000, v{72 + d}')
            else:
                p(f'v_lshlrev_b32 v56, 16, v{72 + 4 * s + d}')
                p(f'v_and_b32 v57, 0xffff0000, v{72 + 4 * s + d}')
                p(f'v_add_f32 v{48 + 2 * d}, v{48 + 2 * d}, v56')
                p(f'v_add_f32 v{49 + 2 * d}, v{49 + 2 * d}, v57')
    for d in range(4):
        p(f'v_lshlrev_b32 v{16 + 2 * d}, 16, v{12 + d}')
        p(f'v_and_b32 v{17 + 2 * d}, 0xffff0000, v{12 + d}')
    for e in range(8):
        p(f'v_fmac_f32 v{16 + e}, v{40 + e}, v{48 + e}')
    for d in range(4):
        p(f'v_cvt_pk_bf16_f32 v{12 + d}, v{16 + 2 * d}, v{17 + 2 * d}')
    p('buffer_store_dwordx4 v[12:15], v5, s[28:31], s21 offen')
    if prof:
        sprof_mid(p, 1)
    ln_core(p, 16, 32, 24, 1.0)
    if prof:
        sprof_mid(p, 2)
    p("""
    buffer_store_dwordx4 v[16:19], v5, s[24:27], s21 offen
    """)
    if prof:
        sprof_end(p, 140509184)
    p('L_ln2_end:')
    p('s_endpgm')
    p.resolve_waits()
    p.fix_hazards()
    return kernel_text('ln2_kernel', p, 72 + 4 * NSPLIT, 0, 80), ('ln2_kernel', 256, 640, 1024)
```

```python
from asmgen import *
from layout import *
from k_small import srd, srd_off
from k_gemm import fold_loop
import math

MF = 'v_mfma_f32_16x16x32_bf16'
sW4, sO, sW6, sWS, sX, sW7, sOut = 8, 12, 16, 20, 24, 28, 32
sWave = 36
sT = 37
pWo, pWg, pWs, pWd, pX, pOut = 40, 42, 46, 48, 50, 52
sM, sK0, sK1, sCnt = 54, 55, 56, 57
sM6, sK6, sM7 = 58, 59, 88
sR4, sC4, sS4, sR6, sC6, sR7, sC7 = 89, 90, 91, 92, 93, 94, 95
sPart, sH2, sAct = 96, 97, 98
NST = 14
vLane, vQ, vG, vR4, vC4, vGG = 250, 251, 252, 253, 254, 255
vL16 = 249
vW6d = [246, 247, 248]
vW7d = [244, 245]
vOne, vF, vFa = 243, 242, 241


class Tail:
    def __init__(self, prof):
        self.p = Prog()
        self.prof = prof

    def stamp_items(self, k):
        if not self.prof:
            return []
        out = [Ins('s_memrealtime s[60:61]'), Ins('s_waitcnt lgkmcnt(0)'), Ins(f's_mov_b32 s{62 + k}, s60')]
        cyc = {0: 82, 1: 82, 7: 83, 8: 83, 11: 99, 12: 99}
        if k in cyc:
            r = cyc[k]
            out += [Ins('s_memtime s[60:61]'), Ins('s_waitcnt lgkmcnt(0)'),
                    Ins(f's_mov_b32 s{r}, s60' if k in (0, 7, 11) else f's_sub_u32 s{r}, s60, s{r}')]
        return out

    def stamp(self, k):
        self.p.add(self.stamp_items(k))


def stream_weave(frags, L, pre):
    w = Weave()
    w.CAP = 2
    G = []
    for f in frags:
        G.append(len(w.mfma))
        for m in f['mf']:
            w.add_mfma(m)
    N = len(frags)
    first = {}
    for n, f in enumerate(frags):
        first.setdefault(f['st'], n)
    bar = {}
    tags = {}
    for st, n in first.items():
        if n >= L:
            bar[st] = G[n - L]
            tags[n - L] = [('st', st)]
    for n in range(N):
        if n < L:
            for r in frags[n]['rd']:
                pre(r)
        else:
            for k, r in enumerate(frags[n]['rd']):
                w.memop(G[n - L] + k, r)
    for n in range(1, N):
        regs = set().union(*[w.mfma[G[n] + k].srcAB for k in range(len(frags[n]['mf']))])
        w.scalar(G[n] - 1, Need(regs, tags.get(n, [])))
    for st, g in bar.items():
        w.scalar(g, 's_barrier')
    return w, G, bar


class VQ:
    def __init__(self, w, spacing):
        self.w, self.sp, self.nextg = w, spacing, 0

    def place(self, g, seq, limit=None):
        w = self.w
        g = max(g, self.nextg - self.sp + 1)
        plan = []
        gm = max(g, self.nextg)
        used = set()
        for x in seq:
            if x[0] == 's':
                while g < len(w.mfma) and (w.sc[g] or g in used):
                    g += 1
                used.add(g)
                plan.append((g, x))
                gm = max(gm, g + 1)
            else:
                plan.append((gm, x))
                g = max(g, gm + 1)
                gm += self.sp
        if max(gg for gg, _ in plan) >= (limit if limit is not None else len(w.mfma)):
            return False
        for gg, x in plan:
            if x[0] == 's':
                w.scalar(gg, x[1])
            else:
                w.memop(gg, x[1], x[2])
        self.nextg = gm
        return True


def emit_seq(p, seq):
    for x in seq:
        p(x[1], x[2] if x[0] == 'm' else None)


SLEEP = 4


def poll(p, name):
    p(f"""
    s_cmp_lg_u32 s{sWave}, 0
    s_cbranch_scc1 L_done_{name}
    s_mov_b32 s{sT}, 0x40000
    L_poll_{name}:
    buffer_load_dword v{vF}, v{vFa}, s[{sWS}:{sWS + 3}], 0 offen sc1
    s_waitcnt vmcnt(0)
    v_cmp_eq_u32 vcc, 0, v{vF}
    s_cbranch_vccz L_done_{name}
    s_sleep {SLEEP}
    s_sub_u32 s{sT}, s{sT}, 1
    s_cbranch_scc0 L_poll_{name}
    L_done_{name}:
    s_barrier
    """)


def signal(p, soff):
    p(f"""
    s_mov_b64 exec, 1
    s_waitcnt vmcnt(0)
    buffer_store_dword v{vOne}, off, s[{sWS}:{sWS + 3}], s{soff} sc1
    s_mov_b64 exec, -1
    """)


P6SLOT = [4096 + 12288 * i for i in [11, 12] + list(range(11))]


def w6_dma(j):
    seq = [('s', f's_add_u32 m0, s{sM6}, {P6SLOT[j % 13]}'), ('s', f's_mov_b32 s{sK6}, {j * 32 * 3072}')]
    for n in range(3):
        seq.append(('m', f'buffer_load_dwordx4 v{vW6d[n]}, s[{sW6}:{sW6 + 3}], s{sK6} offen offset:{1024 * n} lds', ('st', 100 + j)))
    return seq


def w7_dma(j, unit):
    seq = [('s', f's_add_u32 m0, s{sM7}, {unit * 8192}'), ('s', f's_mov_b32 s{sK6}, {j * 64 * 1280}')]
    for n in range(2):
        seq.append(('m', f'buffer_load_dwordx4 v{vW7d[n]}, s[{sW7}:{sW7 + 3}], s{sK6} offen offset:{1024 * n} lds', ('st', 200 + j)))
    return seq


def gen_tail(prof=False, olin=False, early=False, iterprof=False, dbg4=False, max6=13, sleep=4, LW=12, L4=6, L6=6, L7=4, LB7=16, o_flag='', sp6=4, sp7=3):
    global SLEEP
    SLEEP = sleep
    T = Tail(prof)
    p = T.p
    p(f"""
    s_cmp_ge_u32 s2, 256
    s_cbranch_scc1 L_tail_end
    s_load_dwordx2 s[{pWo}:{pWo + 1}], s[0:1], 32
    s_load_dwordx2 s[{pWs}:{pWs + 1}], s[0:1], 104
    s_load_dwordx4 s[{pWg - 2 + 6}:{pWg - 2 + 9}], s[0:1], 48
    """.replace(f's[{pWg - 2 + 6}:{pWg - 2 + 9}]', 's[4:7]'))
    p(f"""
    s_load_dwordx2 s[{pWd}:{pWd + 1}], s[0:1], 64
    s_load_dwordx2 s[{pX}:{pX + 1}], s[0:1], 0
    s_load_dwordx2 s[{pOut}:{pOut + 1}], s[0:1], 88
    """)
    if prof:
        p('s_memtime s[76:77]')
        p('s_memrealtime s[78:79]')
        for k in range(NST):
            p(f's_mov_b32 s{62 + k}, 0')
    p(f"""
    v_lshrrev_b32 v1, 6, v0
    v_and_b32 v{vLane}, 63, v0
    v_readfirstlane_b32 s{sWave}, v1
    v_and_b32 v{vQ}, 15, v0
    v_lshrrev_b32 v{vG}, 4, v{vLane}
    v_lshrrev_b32 v{vR4}, 2, v{vQ}
    v_and_b32 v{vC4}, 3, v0
    v_lshlrev_b32 v{vL16}, 4, v{vLane}
    s_and_b32 s3, s2, 7
    s_lshr_b32 s{sC4}, s2, 3
    s_mul_i32 s{sT}, s{sC4}, 52
    s_lshr_b32 s{sT}, s{sT}, 8
    s_mul_i32 s{sT + 1}, s{sT}, 5
    s_sub_u32 s{sC4}, s{sC4}, s{sT + 1}
    s_mul_i32 s3, s3, 6
    s_add_u32 s3, s3, s{sT}
    s_lshr_b32 s{sS4}, s3, 4
    s_and_b32 s{sR4}, s3, 15
    """)
    vA4 = [[96 + 8 * wdw + t for t in range(8)] for wdw in range(2)]
    vW4d = [112, 113]
    vO = 114
    for n in range(2):
        p(f"""
        v_add_u32 v7, {4 * n}, v{vG}
        v_lshlrev_b32 v8, 1, v7
        v_xor_b32 v8, v8, v{vQ}
        v_lshl_add_u32 v7, v1, 3, v7
        v_mul_u32_u24 v7, 1280, v7
        v_lshl_add_u32 v7, v8, 4, v7
        v_subrev_u32 v{vW4d[n]}, {1024 * n}, v7
        """)
    p(f"""
    v_lshlrev_b32 v7, 9, v{vG}
    v_lshl_add_u32 v{vO}, v{vQ}, 4, v7
    s_mul_i32 s{sT}, s{sS4}, {2048 * 1280}
    s_lshl_b32 s{sT + 1}, s{sC4}, 8
    s_add_u32 s{sT}, s{sT}, s{sT + 1}
    s_sub_u32 s{sT + 1}, {2048 * 1280}, s{sT + 1}
    s_lshl_b32 s{sR4}, s{sR4}, 2
    s_add_u32 s{sR4}, s{sR4}, s{sWave}
    s_mul_i32 s3, s{sR4}, {O_RG}
    s_lshl_b32 s{sT + 2}, s{sS4}, 17
    s_add_u32 s3, s3, s{sT + 2}
    s_add_u32 s3, s3, {WS_O}
    s_lshl_b32 s{sM}, s{sWave}, 11
    s_mov_b32 s{sK0}, 0
    s_mov_b32 s{sK1}, 0
    s_mov_b32 s{sCnt}, 3
    s_waitcnt lgkmcnt(0)
    """)
    srd_off(p, sW4, pWo, f's{sT}', f's{sT + 1}')
    srd_off(p, sO, pWs, 's3', 131072)

    def w4_dma(j):
        seq = [('s', f's_add_u32 m0, s{sM}, {(j % 16) * 8192}')]
        for n in range(2):
            seq.append(('m', f'buffer_load_dwordx4 v{vW4d[n]}, s[{sW4}:{sW4 + 3}], s{sK0} offen offset:{1024 * n} lds', ('st', j)))
        seq.append(('s', f's_add_u32 s{sK0}, s{sK0}, {32 * 1280}' if not dbg4 else f's_mov_b32 s{sK0}, {((j + 1) % 16) * 40960}'))
        return seq

    def o_load(j):
        seq = []
        for qh in range(2):
            r = 8 * (j % 16) + 4 * qh
            seq.append(('m', f'buffer_load_dwordx4 a[{r}:{r + 3}], v{vL16 if olin else vO}, s[{sO}:{sO + 3}], s{sK1} offen offset:{(1024 if olin else 256) * qh + 2048 * (j % 2)}{o_flag}', None))
        if j % 2:
            seq.append(('s', f's_add_u32 s{sK1}, s{sK1}, 4096' if not dbg4 else f's_mov_b32 s{sK1}, {((j + 1) % 16) * 2048}'))
        return seq

    p('s_cmp_ge_u32 s2, 240')
    p('s_cbranch_scc1 L_tail_skip0')
    for j in range(LW):
        emit_seq(p, w4_dma(j) + o_load(j))
    p('L_tail_skip0:')

    p(f"""
    v_and_b32 v7, 1, v{vG}
    v_lshl_add_u32 v8, v7, 2, v{vR4}
    v_lshrrev_b32 v9, 1, v{vG}
    v_lshlrev_b32 v10, 12, v9
    v_lshl_add_u32 v10, v8, 8, v10
    v_lshl_add_u32 v10, v{vC4}, 3, v10
    """)
    for t in range(8):
        p(f"""
        v_xor_b32 v11, {t}, v8
        v_lshl_add_u32 v{vA4[0][t]}, v11, 5, v10
        v_add_u32 v{vA4[1][t]}, 65536, v{vA4[0][t]}
        """)
    p(f"""
    v_lshl_add_u32 v11, v7, 1, v9
    v_lshlrev_b32 v11, 8, v11
    v_lshl_add_u32 v{vGG}, v{vQ}, 4, v11
    v_mov_b32 v{vOne}, 1
    s_mul_i32 s{sPart}, s{sR4}, {2 * F_RG}
    s_mul_i32 s{sT}, s{sS4}, {128 * F_RG}
    s_add_u32 s{sPart}, s{sPart}, s{sT}
    s_lshl_b32 s{sT}, s{sC4}, 12
    s_add_u32 s{sPart}, s{sPart}, s{sT}
    s_add_u32 s{sPart}, s{sPart}, {WS_PART}
    """)
    srd(p, sWS, pWs, pWs + 1, WS_END)
    srd(p, sX, pX, pX + 1, 2621440)
    srd(p, sOut, pOut, pOut + 1, 2621440)
    p(f"""
    s_and_b32 s{sR6}, s2, 1
    s_lshl_b32 s{sR6}, s{sR6}, 3
    s_lshr_b32 s3, s2, 3
    s_and_b32 s{sT}, s3, 7
    s_add_u32 s{sR6}, s{sR6}, s{sT}
    s_and_b32 s{sC6}, s2, 6
    s_lshl_b32 s{sC6}, s{sC6}, 1
    s_lshr_b32 s3, s3, 3
    s_add_u32 s{sC6}, s{sC6}, s3
    s_lshl_b32 s{sR6}, s{sR6}, 2
    s_add_u32 s{sR6}, s{sR6}, s{sWave}
    v_and_b32 v7, 1, v1
    v_mul_u32_u24 v7, 192, v7
    v_add_u32 v7, v7, v{vLane}
    """)
    for n in range(3):
        p(f"""
        v_add_u32 v8, {64 * n}, v7
        v_mul_u32_u24 v9, 5462, v8
        v_lshrrev_b32 v9, 16, v9
        v_mul_u32_u24 v10, 12, v9
        v_sub_u32 v10, v8, v10
        v_lshrrev_b32 v11, 2, v9
        v_and_b32 v11, 2, v11
        v_xor_b32 v10, v10, v11
        v_mul_u32_u24 v9, 3072, v9
        v_lshl_add_u32 v9, v10, 4, v9
        v_subrev_u32 v{vW6d[n]}, {1024 * n}, v9
        """)
    p(f"""
    s_mul_i32 s{sT}, s{sC6}, 192
    s_sub_u32 s{sT + 1}, {640 * 3072}, s{sT}
    s_mul_i32 s{sM6}, s{sWave}, 3072
    s_cmp_ge_u32 s{sWave}, 2
    s_cselect_b32 s4, s6, s4
    s_cselect_b32 s5, s7, s5
    """)
    srd_off(p, sW6, 4, f's{sT}', f's{sT + 1}')
    p(f"""
    s_lshr_b32 s3, s2, 3
    s_lshr_b32 s{sT}, s2, 1
    s_and_b32 s{sT}, s{sT}, 3
    s_mul_i32 s{sT}, s{sT}, 28
    s_add_u32 s3, s3, s{sT}
    s_cmp_ge_u32 s2, 224
    s_cselect_b32 s3, 110, s3
    s_mul_i32 s{sR7}, s3, 205
    s_lshr_b32 s{sR7}, s{sR7}, 10
    s_mul_i32 s{sT}, s{sR7}, 5
    s_sub_u32 s{sC7}, s3, s{sT}
    s_and_b32 s{sT}, s2, 1
    s_mul_i32 s{sT}, s{sT}, 5
    s_add_u32 s{sC7}, s{sC7}, s{sT}
    s_lshl_b32 s{sT}, s{sC7}, 7
    s_sub_u32 s{sT + 1}, {1536 * 1280}, s{sT}
    s_cmp_ge_u32 s{sR7}, 22
    s_cselect_b32 s{sT + 1}, 0, s{sT + 1}
    s_lshl_b32 s{sM7}, s{sWave}, 11
    """)
    srd_off(p, sW7, pWd, f's{sT}', f's{sT + 1}')
    for n in range(2):
        p(f"""
        v_lshrrev_b32 v7, 3, v{vLane}
        v_and_b32 v8, 2, v7
        v_or_b32 v8, {4 * n}, v8
        v_and_b32 v9, 7, v{vLane}
        v_xor_b32 v8, v8, v9
        v_lshl_add_u32 v7, v1, 4, v7
        v_add_u32 v7, {8 * n}, v7
        v_mul_u32_u24 v7, 1280, v7
        v_lshl_add_u32 v7, v8, 4, v7
        v_subrev_u32 v{vW7d[n]}, {1024 * n}, v7
        """)
    vXa, vMa, vPa, vLw, vLr = 236, 237, 238, 239, 240
    p(f"""
    v_and_b32 v7, 7, v0
    v_lshrrev_b32 v8, 3, v0
    v_mul_u32_u24 v9, 1280, v7
    v_lshl_add_u32 v{vXa}, v8, 4, v9
    v_lshlrev_b32 v{vMa}, 5, v8
    v_lshlrev_b32 v9, 8, v8
    v_lshl_add_u32 v{vPa}, v7, 4, v9
    v_lshlrev_b32 v{vLr}, 5, v7
    v_lshl_add_u32 v{vLw}, v1, 3, v{vLr}
    s_lshr_b32 s{sH2}, s2, 1
    s_mul_i32 s{sH2}, s{sH2}, {F_RG}
    s_and_b32 s{sT}, s2, 1
    s_lshl_b32 s{sT}, s{sT}, 7
    s_add_u32 s{sH2}, s{sH2}, s{sT}
    """)
    XA = lambda i: 128 + 28 * i
    ln_pre = [('s', f's_mul_i32 s{sK6}, s2, 10240')]
    for i in range(3):
        ln_pre.append(('m', f'buffer_load_dwordx4 v[{XA(i)}:{XA(i) + 3}], v{vXa}, s[{sX}:{sX + 3}], s{sK6} offen offset:{512 * i}', None))
    for k in range(3):
        ln_pre.append(('s', f's_mov_b32 s{sK6}, {(2 + k) * 2560}'))
        for i in range(3):
            for h in range(2):
                r = XA(i) + 4 + 8 * k + 4 * h
                ln_pre.append(('m', f'buffer_load_dwordx4 v[{r}:{r + 3}], v{vMa}, s[{sWS}:{sWS + 3}], s{sK6} offen offset:{1024 * i + 16 * h}', None))
    if early:
        emit_seq(p, w6_dma(0) + w6_dma(1) + ln_pre)
    for r in range(64):
        p(f'v_mov_b32 v{r}, 0')
    p('s_cmp_ge_u32 s2, 240')
    p('s_cbranch_scc1 L_tail_idle4')

    frags = []
    for s in range(64):
        for t in range(8):
            a = 64 + 4 * t
            so = (s % 16) * 8192
            wd, so = so // 65536, so % 65536
            rd = [f'ds_read_b64_tr_b16 v[{a + 2 * x}:{a + 2 * x + 1}], v{vA4[wd][t]} offset:{so + 2048 * x}' for x in range(2)]
            mf = []
            for qh in range(2):
                d = 8 * t + 4 * qh
                b = 8 * (s % 16) + 4 * qh
                mf.append(f'{MF} v[{d}:{d + 3}], v[{a}:{a + 3}], a[{b}:{b + 3}], v[{d}:{d + 3}]')
            frags.append(dict(st=s, rd=rd, mf=mf))
    pre = Prog()
    w, G, bar = stream_weave(frags, L4, pre)
    vq = VQ(w, 4)
    for s in range(64 - LW):
        assert LW <= 14
        ok = vq.place(16 * s, w4_dma(s + LW) + o_load(s + LW), limit=16 * s + 17)
        assert ok, s
    side = []
    vq.sp = 3
    n6 = 2 if early else 0
    done_pre = early
    for s in range(64 - LW, 64):
        while n6 < max6:
            a = P6SLOT[n6]
            units = [u for u in range(16) if u * 8192 < a + 12288 and (u + 1) * 8192 > a]
            need = max([48 + u + 2 for u in units], default=0)
            if need > 63 or (need and bar[need] >= 16 * s + 16) or vq.nextg >= 16 * s + 16:
                break
            if not vq.place(max(16 * s, bar[need] + 1 if need else 0), w6_dma(n6)):
                break
            side += w6_dma(n6)
            n6 += 1
            if n6 == 2 and not done_pre:
                assert vq.place(16 * s, ln_pre)
                side += ln_pre
                done_pre = True
    print('P6 stages issued inside P4:', n6)
    for it in range(3):
        g = 256 * (it + 1) - 1
        gg = w.free_scalar_gap(g - 8)
        assert gg < g
        w.scalar(gg, f's_sub_u32 s{sCnt}, s{sCnt}, 1')
        if iterprof:
            w.post[g] += [Ins('s_memtime s[60:61]'), Ins('s_waitcnt lgkmcnt(0)'), Ins('s_sub_u32 s60, s60, s82'), Ins('v_mov_b32 v216, v217'), Ins('v_mov_b32 v217, v218'), Ins('v_mov_b32 v218, v219'), Ins('v_mov_b32 v219, s60')]
        w.post[g] += [Ins(f's_cmp_lg_u32 s{sCnt}, 0'), Ins('s_cbranch_scc1 L_p4_loop'), Ins(f'L_mark_{it + 1}:')]
    w.report('p4')
    p.add(Need('', [('st', 0)]))
    p('s_barrier')
    T.stamp(0)
    p.add(pre.items)
    p.add(Need(w.mfma[0].srcAB | w.mfma[1].srcAB))
    if iterprof:
        p('s_memtime s[60:61]\ns_waitcnt lgkmcnt(0)\ns_sub_u32 s60, s60, s82\nv_mov_b32 v219, s60')
    p('L_mark_0:')
    w.emit(p)
    T.stamp(1)
    p('s_barrier')
    for qh in range(2):
        for tp in range(4):
            d = 64 + 16 * qh + 4 * tp
            for h in range(2):
                a = 8 * (2 * tp + h) + 4 * qh
                p(f'v_cvt_pk_bf16_f32 v{d + 2 * h}, v{a}, v{a + 1}')
                p(f'v_cvt_pk_bf16_f32 v{d + 2 * h + 1}, v{a + 2}, v{a + 3}')
        for tp in range(4):
            d = 64 + 16 * qh + 4 * tp
            p(f'v_permlane16_swap_b32 v{d}, v{d + 2}')
            p(f'v_permlane16_swap_b32 v{d + 1}, v{d + 3}')
        for tp in range(4):
            d = 64 + 16 * qh + 4 * tp
            p(f'buffer_store_dwordx4 v[{d}:{d + 3}], v{vGG}, s[{sWS}:{sWS + 3}], s{sPart} offen offset:{1024 * tp} sc1')
        if qh == 0:
            p(f's_add_u32 s{sPart}, s{sPart}, {F_RG}')
    p(f"""
    s_mul_i32 s{sT + 1}, s{sS4}, 5
    s_add_u32 s{sT + 1}, s{sT + 1}, s{sC4}
    s_lshl_b32 s{sT + 2}, s{sR4}, 4
    s_add_u32 s{sT + 1}, s{sT + 1}, s{sT + 2}
    s_lshl_b32 s{sT + 1}, s{sT + 1}, {FSH}
    s_add_u32 s{sT + 1}, s{sT + 1}, {F_P}
    """)
    signal(p, sT + 1)
    p('L_tail_ln2:')
    T.stamp(2)

    p(f"""
    s_lshr_b32 s{sT + 1}, s2, 2
    s_lshl_b32 s{sT + 1}, s{sT + 1}, {4 + FSH}
    s_add_u32 s{sT + 2}, s{sT + 1}, {F_P}
    v_min_u32 v{vFa}, 14, v{vLane}
    v_lshl_add_u32 v{vFa}, v{vFa}, {FSH}, s{sT + 2}
    s_waitcnt vmcnt(0)
    """)
    X = lambda i: 64 + 8 * i
    for i in range(3):
        for d in range(4):
            p(f'v_lshlrev_b32 v{X(i) + 2 * d}, 16, v{XA(i) + d}')
            p(f'v_and_b32 v{X(i) + 2 * d + 1}, 0xffff0000, v{XA(i) + d}')
        for e in range(8):
            p(f'v_add_f32 v{XA(i) + 20 + e}, 1.0, v{XA(i) + 20 + e}')
    poll(p, 'p')
    T.stamp(3)
    PR = lambda i, s: 12 * i + 4 * s
    p(f's_add_u32 s{sT}, s{sH2}, {WS_PART}')
    for s in range(NSPLIT):
        for i in range(2):
            p(f's_add_u32 s{sT + 2}, s{sT}, {s * 128 * F_RG + i * 8192}')
            p(f'buffer_load_dwordx4 v[{PR(i, s)}:{PR(i, s) + 3}], v{vPa}, s[{sWS}:{sWS + 3}], s{sT + 2} offen sc1')
    p(f's_cmp_ge_u32 s{sWave}, 2')
    p('s_cbranch_scc1 L_ln2_two')

    def ln2_body(nch, tag):
        if nch == 3:
            for s in range(NSPLIT):
                p(f's_add_u32 s{sT + 2}, s{sT}, {s * 128 * F_RG + 2 * 8192}')
                p(f'buffer_load_dwordx4 v[{PR(2, s)}:{PR(2, s) + 3}], v{vPa}, s[{sWS}:{sWS + 3}], s{sT + 2} offen sc1')
        for j in range(n6, 13):
            emit_seq(p, w6_dma(j))
        S = 40
        for i in range(nch):
            for s in range(NSPLIT):
                for d in range(4):
                    r = PR(i, s) + d
                    if s == 0:
                        p(f'v_lshlrev_b32 v{S + 2 * d}, 16, v{r}')
                        p(f'v_and_b32 v{S + 2 * d + 1}, 0xffff0000, v{r}')
                    else:
                        p(f'v_lshlrev_b32 v48, 16, v{r}')
                        p(f'v_and_b32 v49, 0xffff0000, v{r}')
                        p(f'v_pk_add_f32 v[{S + 2 * d}:{S + 2 * d + 1}], v[{S + 2 * d}:{S + 2 * d + 1}], v[48:49]')
            for d in range(4):
                p(f'v_pk_fma_f32 v[{X(i) + 2 * d}:{X(i) + 2 * d + 1}], v[{XA(i) + 4 + 2 * d}:{XA(i) + 5 + 2 * d}], v[{S + 2 * d}:{S + 2 * d + 1}], v[{X(i) + 2 * d}:{X(i) + 2 * d + 1}]')
        if tag == 'a':
            T.stamp(4)
        else:
            T.stamp(4)
        p(f's_add_u32 s{sT}, s{sH2}, {WS_X1}')
        for i in range(nch):
            for d in range(4):
                p(f'v_cvt_pk_bf16_f32 v{4 * i + d}, v{X(i) + 2 * d}, v{X(i) + 2 * d + 1}')
            p(f's_add_u32 s{sT + 2}, s{sT}, {i * 8192}')
            p(f'buffer_store_dwordx4 v[{4 * i}:{4 * i + 3}], v{vPa}, s[{sWS}:{sWS + 3}], s{sT + 2} offen sc1')
        n = 4 * nch
        p(f'v_pk_add_f32 v[40:41], v[{X(0)}:{X(0) + 1}], v[{X(0) + 2}:{X(0) + 3}]')
        p(f'v_pk_add_f32 v[42:43], v[{X(0) + 4}:{X(0) + 5}], v[{X(0) + 6}:{X(0) + 7}]')
        for k in range(4, n):
            p(f'v_pk_add_f32 v[{40 + 2 * (k % 2)}:{41 + 2 * (k % 2)}], v[{40 + 2 * (k % 2)}:{41 + 2 * (k % 2)}], v[{64 + 2 * k}:{65 + 2 * k}]')
        p('v_pk_add_f32 v[40:41], v[40:41], v[42:43]')
        p('v_add_f32 v40, v40, v41')

        def red(v, t):
            p(f"""
            v_add_f32_dpp v{v}, v{v}, v{v} row_ror:8 row_mask:0xf bank_mask:0xf
            v_mov_b32 v{t}, v{v}
            v_permlane16_swap_b32 v{v}, v{t}
            v_add_f32 v{v}, v{v}, v{t}
            v_mov_b32 v{t}, v{v}
            v_permlane32_swap_b32 v{v}, v{t}
            v_add_f32 v{v}, v{v}, v{t}
            """)
        red(40, 41)
        p(f'v_mul_f32 v50, {f2h(1.0 / (64 * nch))}, v40')
        p('v_mul_f32 v44, -1.0, v50')
        p('v_mov_b32 v45, v44')
        for k in range(n):
            p(f'v_pk_add_f32 v[{64 + 2 * k}:{65 + 2 * k}], v[{64 + 2 * k}:{65 + 2 * k}], v[44:45]')
        p('v_pk_mul_f32 v[40:41], v[64:65], v[64:65]')
        p('v_pk_mul_f32 v[42:43], v[66:67], v[66:67]')
        for k in range(2, n):
            r = 40 + 2 * (k % 2)
            p(f'v_pk_fma_f32 v[{r}:{r + 1}], v[{64 + 2 * k}:{65 + 2 * k}], v[{64 + 2 * k}:{65 + 2 * k}], v[{r}:{r + 1}]')
        p('v_pk_add_f32 v[40:41], v[40:41], v[42:43]')
        p('v_add_f32 v51, v40, v41')
        red(51, 41)
        p(f"""
        ds_write_b64 v{vLw}, v[50:51]
        s_waitcnt lgkmcnt(0)
        s_barrier
        ds_read_b128 v[52:55], v{vLr}
        ds_read_b128 v[56:59], v{vLr} offset:16
        v_add_f32 v40, v52, v54
        v_add_f32 v41, v56, v58
        v_mul_f32 v40, {f2h(0.3)}, v40
        v_fmac_f32 v40, {f2h(0.2)}, v41
        v_sub_f32 v52, v52, v40
        v_sub_f32 v54, v54, v40
        v_sub_f32 v56, v56, v40
        v_sub_f32 v58, v58, v40
        v_mul_f32 v42, v52, v52
        v_fmac_f32 v42, v54, v54
        v_mul_f32 v43, v56, v56
        v_fmac_f32 v43, v58, v58
        v_add_f32 v53, v53, v55
        v_add_f32 v57, v57, v59
        v_add_f32 v53, v53, v57
        v_mov_b32 v46, {f2h(1e-5)}
        v_fmac_f32 v46, {f2h(1.0 / 640)}, v53
        v_fmac_f32 v46, {f2h(0.3)}, v42
        v_fmac_f32 v46, {f2h(0.2)}, v43
        v_rsq_f32 v46, v46
        v_sub_f32 v44, v50, v40
        v_mul_f32 v44, v44, v46
        v_mov_b32 v47, v46
        v_mov_b32 v45, v44
        """)
        p(f's_add_u32 s{sT}, s{sH2}, {WS_H2}')
        for i in range(nch):
            for d in range(4):
                x = X(i) + 2 * d
                p(f'v_pk_fma_f32 v[{x}:{x + 1}], v[{x}:{x + 1}], v[46:47], v[44:45]')
            for d in range(4):
                x = X(i) + 2 * d
                p(f'v_pk_fma_f32 v[{x}:{x + 1}], v[{x}:{x + 1}], v[{XA(i) + 20 + 2 * d}:{XA(i) + 21 + 2 * d}], v[{XA(i) + 12 + 2 * d}:{XA(i) + 13 + 2 * d}]')
            for d in range(4):
                p(f'v_cvt_pk_bf16_f32 v{16 + 4 * i + d}, v{X(i) + 2 * d}, v{X(i) + 2 * d + 1}')
            p(f's_add_u32 s{sT + 2}, s{sT}, {i * 8192}')
            p(f'buffer_store_dwordx4 v[{16 + 4 * i}:{16 + 4 * i + 3}], v{vPa}, s[{sWS}:{sWS + 3}], s{sT + 2} offen sc1')

    mark = len(p.items)
    ln2_body(3, 'a')
    p('L_ln2_join:')
    vA6 = [[228 + 2 * wdw + e for e in range(2)] for wdw in range(3)]
    vH1 = 234
    p(f"""
    v_lshl_add_u32 v7, v{vG}, 3, v{vR4}
    v_mul_u32_u24 v7, 192, v7
    v_lshl_add_u32 v7, v{vC4}, 3, v7
    v_and_b32 v8, 1, v{vG}
    v_lshl_add_u32 v{vA6[0][0]}, v8, 5, v7
    v_xor_b32 v8, 1, v8
    v_lshl_add_u32 v{vA6[0][1]}, v8, 5, v7
    v_add_u32 v{vH1}, {F_RG}, v{vL16}
    """.replace('v7', 'v100').replace('v8', 'v101'))
    for wdw in range(1, 3):
        for e in range(2):
            p(f'v_add_u32 v{vA6[wdw][e]}, {61440 * wdw}, v{vA6[0][e]}')
    p(f"""
    s_and_b32 s{sT + 2}, s2, 3
    s_lshl_b32 s{sT + 2}, s{sT + 2}, 2
    s_add_u32 s{sT + 2}, s{sT + 2}, s{sWave}
    s_lshl_b32 s{sT + 2}, s{sT + 2}, {FSH}
    s_add_u32 s{sT + 1}, s{sT + 1}, s{sT + 2}
    s_add_u32 s{sT + 1}, s{sT + 1}, {F_H}
    s_lshl_b32 s{sT + 2}, s{sR6}, {4 + FSH}
    s_add_u32 s{sT + 2}, s{sT + 2}, {F_H}
    v_lshl_add_u32 v{vFa}, v{vLane}, {FSH}, s{sT + 2}
    s_mul_i32 s{sK1}, s{sR6}, {2 * F_RG}
    s_add_u32 s{sK1}, s{sK1}, {WS_H2}
    """)
    signal(p, sT + 1)
    T.stamp(5)
    poll(p, 'h')
    T.stamp(6)
    for s in range(20):
        for qh in range(2):
            r = 8 * s + 4 * qh
            p(f'buffer_load_dwordx4 a[{r}:{r + 3}], v{[vL16, vH1][qh]}, s[{sWS}:{sWS + 3}], s{sK1} offen offset:{1024 * (s % 4)} sc1')
        if s % 4 == 3 and s < 19:
            p(f's_add_u32 s{sK1}, s{sK1}, 4096')

    frags = []
    for s in range(20):
        for f in range(12):
            n = 12 * s + f
            a = 96 + 4 * (n % 8)
            so = P6SLOT[s % 13]
            wd = (so - 4096) // 61440
            so -= 61440 * wd
            Tn, m = f // 2, f % 2
            rd = [f'ds_read_b64_tr_b16 v[{a + 2 * x}:{a + 2 * x + 1}], v{vA6[wd][Tn % 2]} offset:{so + 6144 * m + 64 * (Tn // 2) + 768 * x}' for x in range(2)]
            mf = []
            for qh in range(2):
                d = 8 * f + 4 * qh
                b = 8 * s + 4 * qh
                mf.append(f"{MF} v[{d}:{d + 3}], v[{a}:{a + 3}], a[{b}:{b + 3}], {'0' if s == 0 else f'v[{d}:{d + 3}]'}")
            frags.append(dict(st=100 + s, rd=rd, mf=mf))
    pre = Prog()
    w, G, bar = stream_weave(frags, L6, pre)
    vq = VQ(w, sp6)
    for j in range(13, 20):
        assert vq.place(bar[100 + j - 13 + 2] + 1, w6_dma(j))
    last_use = {}
    for s in range(20):
        a = P6SLOT[s % 13]
        for u in range(20):
            if u * 8192 < a + 12288 and (u + 1) * 8192 > a:
                last_use[u] = s
    order = sorted(range(20), key=lambda u: last_use[u])
    n7 = 0
    for u in order:
        st = last_use[u] + 2
        if st > 19 or not vq.place(bar[100 + st] + 1, w7_dma(n7, u)):
            break
        n7 += 1
    print('P7 stages issued inside P6:', n7)
    w.report('p6')
    p.add(pre.items)
    p.add(Need(w.mfma[0].srcAB | w.mfma[1].srcAB))
    T.stamp(7)
    w.emit(p)
    T.stamp(8)
    p('s_barrier')
    for j in range(n7, 20):
        emit_seq(p, w7_dma(j, order[j]))
    c1 = -2 * math.log2(math.e) * math.sqrt(2 / math.pi)
    c2 = c1 * 0.044715
    p(f"""
    v_mov_b32 v128, {f2h(c1)}
    v_mov_b32 v129, {f2h(c1)}
    v_mov_b32 v130, {f2h(c2)}
    v_mov_b32 v131, {f2h(c2)}
    v_mov_b32 v132, 1.0
    v_mov_b32 v133, 1.0
    s_mul_i32 s{sAct}, s{sR6}, {2 * A_RG}
    s_mul_i32 s{sT}, s{sC6}, 3072
    s_add_u32 s{sAct}, s{sAct}, s{sT}
    s_add_u32 s{sAct}, s{sAct}, {WS_ACT}
    s_add_u32 s{sT}, s{sAct}, {A_RG}
    """)
    TT = 136
    P2 = lambda r: f'v[{r}:{r + 1}]'
    for c in range(3):
        for qh in range(2):
            xs = [8 * (4 * c + 2 * h) + 4 * qh + 2 * k for h in range(2) for k in range(2)]
            for k, x in enumerate(xs):
                p(f'v_pk_mul_f32 {P2(TT + 2 * k)}, {P2(x)}, {P2(x)}')
            for k, x in enumerate(xs):
                p(f'v_pk_fma_f32 {P2(TT + 2 * k)}, {P2(TT + 2 * k)}, v[130:131], v[128:129]')
            for k, x in enumerate(xs):
                p(f'v_pk_mul_f32 {P2(TT + 2 * k)}, {P2(TT + 2 * k)}, {P2(x)}')
            for k in range(8):
                p(f'v_exp_f32 v{TT + k}, v{TT + k}')
            for k, x in enumerate(xs):
                p(f'v_pk_mul_f32 {P2(x)}, {P2(x)}, {P2(x + 8)}')
            for k, x in enumerate(xs):
                p(f'v_pk_add_f32 {P2(TT + 2 * k)}, {P2(TT + 2 * k)}, v[132:133]')
            for k in range(8):
                p(f'v_rcp_f32 v{TT + k}, v{TT + k}')
            for k, x in enumerate(xs):
                p(f'v_pk_mul_f32 {P2(x)}, {P2(x)}, {P2(TT + 2 * k)}')
            d = 144 + 4 * (2 * c + qh)
            for k, x in enumerate(xs):
                p(f'v_cvt_pk_bf16_f32 v{d + k}, v{x}, v{x + 1}')
            p(f'v_permlane16_swap_b32 v{d}, v{d + 2}')
            p(f'v_permlane16_swap_b32 v{d + 1}, v{d + 3}')
            p(f'buffer_store_dwordx4 v[{d}:{d + 3}], v{vGG}, s[{sWS}:{sWS + 3}], s{[sAct, sT][qh]} offen offset:{1024 * c} sc1')
    vA7 = [[100 + 4 * wdw + t for t in range(4)] for wdw in range(3)]
    vB7 = [112, 113, 114]
    vSt, vGb, vEw, vEr = 115, 116, 117, 118
    EXU = order[4]
    exu = sorted(order[4:18])
    EXA = None
    for k in range(len(exu) - 2):
        if exu[k + 2] == exu[k] + 2:
            EXA = exu[k] * 8192
            break
    assert EXA is not None
    p(f"""
    s_lshr_b32 s4, s{sWave}, 1
    s_and_b32 s5, s{sWave}, 1
    v_lshl_add_u32 v96, v{vG}, 3, v{vR4}
    v_lshlrev_b32 v96, 7, v96
    v_lshl_add_u32 v96, v{vC4}, 3, v96
    s_lshl_b32 s6, s5, 12
    v_add_u32 v96, s6, v96
    v_and_b32 v97, 1, v{vG}
    v_lshrrev_b32 v98, 1, v{vR4}
    v_lshl_add_u32 v97, v97, 1, v98
    s_lshl_b32 s6, s5, 1
    v_xor_b32 v97, s6, v97
    """)
    for t in range(4):
        p(f'v_xor_b32 v98, {t}, v97')
        p(f'v_lshl_add_u32 v{vA7[0][t]}, v98, 5, v96')
        for wdw in range(1, 3):
            p(f'v_add_u32 v{vA7[wdw][t]}, {65536 * wdw}, v{vA7[0][t]}')
    p(f"""
    s_lshl_b32 s6, s5, 10
    v_add_u32 v{vB7[0]}, s6, v{vL16}
    v_add_u32 v{vB7[1]}, {A_RG}, v{vB7[0]}
    v_add_u32 v{vB7[2]}, {2 * A_RG}, v{vB7[0]}
    s_mul_i32 s6, s{sR7}, 6
    s_mul_i32 s7, s4, 3
    s_add_u32 s6, s6, s7
    s_mul_i32 s{sK1}, s6, {A_RG}
    s_add_u32 s{sK1}, s{sK1}, {WS_ACT}
    s_lshr_b32 s7, s6, 1
    s_lshl_b32 s7, s7, 4
    v_min_u32 v96, 47, v{vLane}
    v_add_u32 v96, s7, v96
    v_min_u32 v96, 1023, v96
    v_lshlrev_b32 v96, {FSH}, v96
    v_add_u32 v{vFa}, {F_A}, v96
    s_mul_i32 s3, s6, {F_RG}
    s_mul_i32 s6, s6, 20480
    s_lshl_b32 s7, s{sC7}, 1
    s_add_u32 s7, s7, s5
    s_lshl_b32 s{sPart}, s7, 10
    s_add_u32 s{sPart}, s{sPart}, s3
    s_add_u32 s{sPart}, s{sPart}, {WS_X1}
    s_lshl_b32 s{sH2}, s7, 6
    s_add_u32 s{sH2}, s{sH2}, s6
    s_lshl_b32 s7, s7, 7
    s_add_u32 s7, s7, {5 * 2560}
    v_lshrrev_b32 v96, 8, v{vGG}
    v_lshlrev_b32 v{vGb}, 5, v96
    v_mul_u32_u24 v97, 1280, v{vQ}
    v_lshl_add_u32 v{vSt}, v96, 4, v97
    s_mul_i32 s6, s{sWave}, 6144
    s_add_u32 s6, s6, {EXA}
    v_add_u32 v{vEw}, s6, v{vL16}
    s_xor_b32 s6, s{sWave}, 1
    s_mul_i32 s6, s6, 6144
    s_add_u32 s6, s6, {EXA}
    v_add_u32 v{vEr}, s6, v{vL16}
    s_lshl_b32 s{sT + 1}, s{sR6}, 4
    s_add_u32 s{sT + 1}, s{sT + 1}, s{sC6}
    s_lshl_b32 s{sT + 1}, s{sT + 1}, {FSH}
    s_add_u32 s{sT + 1}, s{sT + 1}, {F_A}
    """)
    signal(p, sT + 1)
    T.stamp(9)
    p(f's_cmp_ge_u32 s{sR7}, 22')
    p('s_cbranch_scc1 L_tail_fin')
    poll(p, 'a')
    T.stamp(10)
    NB7 = 20

    def b7_load(j):
        seq = []
        for q in range(3):
            r = 12 * (j % NB7) + 4 * q
            seq.append(('m', f'buffer_load_dwordx4 a[{r}:{r + 3}], v{vB7[q]}, s[{sWS}:{sWS + 3}], s{sK1} offen offset:{2048 * (j % 2)} sc1', None))
        if j % 2:
            seq.append(('s', f's_add_u32 s{sK1}, s{sK1}, 4096'))
        return seq

    for j in range(LB7):
        emit_seq(p, b7_load(j))
    vX, vGv = 128, 140
    epi_loads = []
    for q in range(3):
        epi_loads.append(('m', f'buffer_load_dwordx4 v[{vX + 4 * q}:{vX + 4 * q + 3}], v{vGG}, s[{sWS}:{sWS + 3}], s{sPart} offen sc1', None))
        if q < 2:
            epi_loads.append(('s', f's_add_u32 s{sPart}, s{sPart}, {F_RG}'))
    for h in range(2):
        epi_loads.append(('m', f'buffer_load_dwordx4 v[{vGv + 4 * h}:{vGv + 4 * h + 3}], v{vGb}, s[{sWS}:{sWS + 3}], s7 offen offset:{16 * h}', None))

    unit7 = lambda j: order[j % 20]
    frags = []
    for s in range(24):
        for t in range(4):
            n = 4 * s + t
            a = 64 + 4 * (n % 8)
            so = unit7(s) * 8192
            wd, so = so // 65536, so % 65536
            rd = [f'ds_read_b64_tr_b16 v[{a + 2 * x}:{a + 2 * x + 1}], v{vA7[wd][t]} offset:{so + 512 * x}' for x in range(2)]
            mf = []
            for q in range(3):
                d = 24 * (t // 2) + 8 * q + 4 * (t % 2)
                b = 12 * (s % NB7) + 4 * q
                mf.append(f"{MF} v[{d}:{d + 3}], v[{a}:{a + 3}], a[{b}:{b + 3}], {'0' if s == 0 else f'v[{d}:{d + 3}]'}")
            frags.append(dict(st=200 + s, rd=rd, mf=mf))
    pre = Prog()
    w, G, bar = stream_weave(frags, L7, pre)
    for st, g in bar.items():
        if not (st - 200 in (5, 20)):
            w.sc[g] = [x for x in w.sc[g] if not (isinstance(x, Ins) and x.kind == 'barrier')]
    g20 = bar[220]
    for x in w.sc[g20 - 1]:
        if isinstance(x, Need):
            x.tags |= {('st', 220 + k) for k in range(4)}
    vq = VQ(w, sp7)
    jb = LB7
    for s in range(24):
        if s == 4:
            for j in range(20, 24):
                assert vq.place(bar[205] + 1, w7_dma(j, unit7(j)))
        if jb < 24 and jb - NB7 < s:
            assert vq.place(12 * s, b7_load(jb))
            jb += 1
    assert jb == 24
    assert vq.place(0, epi_loads)
    w.report('p7')
    p.add(pre.items)
    p.add(Need(w.mfma[0].srcAB | w.mfma[1].srcAB | w.mfma[2].srcAB))
    T.stamp(11)
    w.emit(p)
    T.stamp(12)
    for k in range(6):
        p(f'ds_write_b128 v{vEw}, v[{24 + 4 * k}:{27 + 4 * k}] offset:{1024 * k}')
    for q in range(3):
        for d in range(4):
            p(f'v_lshlrev_b32 v{64 + 8 * q + 2 * d}, 16, v{vX + 4 * q + d}')
            p(f'v_and_b32 v{65 + 8 * q + 2 * d}, 0xffff0000, v{vX + 4 * q + d}')
    p('s_waitcnt lgkmcnt(0)')
    p('s_barrier')
    for k in range(6):
        p(f'ds_read_b128 v[{24 + 4 * k}:{27 + 4 * k}], v{vEr} offset:{1024 * k}')
    for q in range(3):
        for k in range(4):
            p(f'v_pk_add_f32 {P2(8 * q + 2 * k)}, {P2(8 * q + 2 * k)}, {P2(24 + 8 * q + 2 * k)}')
        for k in range(4):
            p(f'v_permlane16_swap_b32 v{8 * q + k}, v{8 * q + 4 + k}')
        for k in range(4):
            p(f'v_pk_fma_f32 {P2(64 + 8 * q + 2 * k)}, {P2(vGv + 2 * k)}, {P2(8 * q + 2 * k)}, {P2(64 + 8 * q + 2 * k)}')
        for d in range(4):
            p(f'v_cvt_pk_bf16_f32 v{8 * q + d}, v{64 + 8 * q + 2 * d}, v{65 + 8 * q + 2 * d}')
        p(f'buffer_store_dwordx4 v[{8 * q}:{8 * q + 3}], v{vSt}, s[{sOut}:{sOut + 3}], s{sH2} offen')
        if q < 2:
            p(f's_add_u32 s{sH2}, s{sH2}, 20480')
    p('L_tail_fin:')
    if prof:
        p('s_waitcnt vmcnt(0)')
        T.stamp(13)
        p(f"""
        s_memtime s[80:81]
        s_lshl_b32 s6, s2, 2
        s_add_u32 s6, s6, s{sWave}
        s_lshl_b32 s6, s6, 7
        s_add_u32 s6, s6, 0x8700000
        s_waitcnt lgkmcnt(0)
        """)
        srd_off(p, 84, pWs, 's6', 128)
        p('v_mov_b32 v16, s82\nv_mov_b32 v17, s83\nv_mov_b32 v18, s99')
        for k in range(NST):
            p(f'v_mov_b32 v{k}, s{62 + k}')
        p('v_mov_b32 v14, s78')
        p('s_sub_u32 s80, s80, s76')
        p('v_mov_b32 v15, s80')
        for k in range(4):
            p(f'v_mov_b32 v{20 + k}, v{216 + k}')
        for k in range(6):
            p(f'buffer_store_dwordx4 v[{4 * k}:{4 * k + 3}], off, s[84:87], 0 offset:{16 * k}')
    p('L_tail_end:')
    p('s_endpgm')

    p.add(Reset())
    p('L_ln2_two:')
    for s in range(NSPLIT):
        for i in range(2):
            x = Ins(f'buffer_load_dwordx4 v[{PR(i, s)}:{PR(i, s) + 3}], v{vPa}, s[{sWS}:{sWS + 3}], s{sT + 2} offen sc1')
            x.note = 'ghost'
            p.add(x)
    ln2_body(2, 'b')
    p('s_branch L_ln2_join')
    p.add(Reset())
    p('L_tail_idle4:')
    emit_seq(p, side)
    p('s_branch L_tail_ln2')
    st = p.resolve_waits()
    p.items = [x for x in p.items if x.note != 'ghost']
    nn = p.fix_hazards()
    fold_loop(p, 'L_p4_loop')
    print('tail waits', st, 'nops', nn)
    return kernel_text('tail_kernel', p, 256, 256, 100), ('tail_kernel', 256, 256, 163840)
```

```python
import struct, math
WS_MOD = 0
WS_H = 0x10000
WS_O = 0x400000
WS_PART = 0x2000000
WS_H2 = 0x3000000
WS_X1 = 0x3400000
WS_ACT = 0x3800000
NSPLIT = 3
QSCALE = math.log2(math.e) * 192 ** -0.5
def f2h(x):
    return '0x%08x' % struct.unpack('<I', struct.pack('<f', x))[0]
import os
PADO = int(os.environ.get('PADO', 0)); PADF = int(os.environ.get('PADF', 0)); PADA = int(os.environ.get('PADA', 0))
O_RG = 393216 + PADO
F_RG = 20480 + PADF
A_RG = 49152 + PADA
WS_END = WS_ACT + 128 * A_RG
FSH = int(os.environ.get('FSH', 7))
WS_FLAG = 0x300000
F_P, F_H, F_A, F_O = (WS_FLAG + (k << (10 + FSH)) for k in range(4))
```

```python
import sys
from k_small import *
from k_att import gen_att
from k_gemm import gen_p4, gen_p6, gen_p7
HEAD = open('adaLN_cond__sliding_block_cached__geglu_ffn__prompt.s.ref').read().split('; Override launch')[0]
def build(kernels, path):
    out = HEAD
    for (_, _), (name, grid, block, lds) in kernels:
        out += f'; @launch kernel={name} grid=({grid},1,1) block=({block},1,1) lds={lds}\n'
    out += '.amdgcn_target "amdgcn-amd-amdhsa--gfx950"\n'
    out += f'; layout PADO={PADO} PADF={PADF} PADA={PADA}\n'
    for (code, _), _ in kernels:
        out += code
    out += 'L_code_end:\n'
    for (_, desc), _ in kernels:
        out += desc
    open(path, 'w').write(out)
    print('wrote', path, len(out), 'bytes')
if __name__ == '__main__':
    prof = 'prof' in sys.argv
    kw = {}
    for a in sys.argv[2:]:
        if '=' in a:
            k, v = a.split('=', 1)
            kn, pn = k.split('.')
            try:
                v = eval(v)
            except Exception:
                pass
            kw.setdefault(kn, {})[pn] = v
    g = lambda n: kw.get(n, {})
    ks = [gen_mod(prof=prof, **g('mod')), gen_ln1(prof=prof, **g('ln1')), gen_att(prof=prof, **g('att')), gen_p4(prof=prof, **g('p4')), gen_ln2(prof=prof, **g('ln2')), gen_p6(prof=prof, **g('p6')), gen_p7(prof=prof, **g('p7'))]
    if 'split' not in sys.argv:
        from k_tail import gen_tail
        ks = ks[:3] + [gen_tail(prof=prof, **g('tail'))]
    if 'empty' in sys.argv:
        for i in range(3):
            p = Prog(); p('s_endpgm')
            ks.insert(0, (kernel_text(f'e{i}_kernel', p, 8, 0, 16), (f'e{i}_kernel', 256, 256, 0)))
    build(ks, sys.argv[1])
```
